```python
import torch

def _softmax(x, axis=-1):
    return torch.softmax(x, dim=axis)

def _gelu(x):
    return torch.nn.functional.gelu(x, approximate='tanh')

def _silu(x):
    return torch.nn.functional.silu(x)

def _sigmoid(x):
    return torch.sigmoid(x)

def _layernorm(x, axis=-1, eps=1e-05):
    m = x.mean(dim=axis, keepdim=True)
    v = x.var(dim=axis, keepdim=True, unbiased=False)
    return (x - m) / torch.sqrt(v + eps)

def _scatter_add(tgt, idx, src, axis=0):
    return tgt.clone().index_add_(axis, idx, src)

def _segment_sum(src, seg, n):
    out = torch.zeros((n,) + src.shape[1:], dtype=src.dtype)
    return out.index_add_(0, seg, src)

def _pad(x, pw):
    flat = tuple((v for pair in reversed(pw) for v in pair))
    return torch.nn.functional.pad(x, flat)
kernel_name = 'adaLN_cond__gqa_block_cached__moe_arch_mod__prompt'

def setup_inputs():

    _w = lambda a: (lambda t: t.to(torch.bfloat16) if t.is_floating_point() else t)(torch.as_tensor(a))

    def _A_setup():
        B, Sq, D = (1, 2048, 448)
        Hq, Hkv, Sk, Dh = (16, 8, 2048, 256)
        assert Hq % Hkv == 0, (Hq, Hkv)
        return {'x': _w((lambda *s: torch.randn(*s, dtype=torch.bfloat16) * 0.05)(B, Sq, D)), 'k_cache': _w((lambda *s: torch.randn(*s, dtype=torch.bfloat16) * 3.2)(B, Hkv, Sk, Dh)), 'v_cache': _w((lambda *s: torch.randn(*s, dtype=torch.bfloat16) * 0.4)(B, Hkv, Sk, Dh)), 'wq': _w((lambda *s: torch.randn(*s, dtype=torch.bfloat16) * 3.2)(D, Hq * Dh) * D ** (-0.5)), 'wo': _w((lambda *s: torch.randn(*s, dtype=torch.bfloat16) * 0.4)(Hq * Dh, D) * (Hq * Dh) ** (-0.5))}
    _A_in = _A_setup()

    def _B_setup():
        B, S, D, F, C = (1, 2048, 448, 1792, 1)
        return {'x': _w((lambda *s: torch.randn(*s, dtype=torch.bfloat16) * 0.05)(B, S, D)), 'w_r': _w((lambda *s: torch.randn(*s, dtype=torch.bfloat16) * 3.2)(D)), 'w_gate': _w((lambda *s: torch.randn(*s, dtype=torch.bfloat16) * 0.1)(D, F)), 'w_up': _w((lambda *s: torch.randn(*s, dtype=torch.bfloat16) * 0.1)(D, F)), 'w_down': _w((lambda *s: torch.randn(*s, dtype=torch.bfloat16) * 0.1)(F, D))}
    _B_in = _B_setup()
    return {'A_x': _A_in['x'], 'A_k_cache': _A_in['k_cache'], 'A_v_cache': _A_in['v_cache'], 'A_wq': _A_in['wq'], 'A_wo': _A_in['wo'], 'B_x': _B_in['x'], 'B_w_r': _B_in['w_r'], 'B_w_gate': _B_in['w_gate'], 'B_w_up': _B_in['w_up'], 'B_w_down': _B_in['w_down'], 'c': _w((lambda *s: torch.randn(*s, dtype=torch.bfloat16) * 0.1)(1, 448) * 8.0), 'w_mod': _w((lambda *s: torch.randn(*s, dtype=torch.bfloat16) * 0.1)(448, 6 * 448) * 448 ** (-0.5) * 8.0)}

def reference(A_x, A_k_cache, A_v_cache, A_wq, A_wo, B_x, B_w_r, B_w_gate, B_w_up, B_w_down, c, w_mod):

    def _A_ref(x, k_cache, v_cache, wq, wo):
        B, Sq, D = x.shape
        Hq, Dh = (16, 256)
        Hkv = k_cache.shape[1]
        rep = Hq // Hkv
        q = (lambda x, *d: x.permute(*d))((x @ wq).reshape(B, Sq, Hq, Dh), 0, 2, 1, 3)
        k = (lambda x, n, axis: torch.repeat_interleave(x, n, dim=axis))(k_cache, rep, axis=1)
        v = (lambda x, n, axis: torch.repeat_interleave(x, n, dim=axis))(v_cache, rep, axis=1)
        scores = torch.einsum('bhqd,bhkd->bhqk', q, k) * Dh ** (-0.5)
        p = _softmax(scores, axis=-1)
        o = torch.einsum('bhqk,bhkd->bhqd', p, v)
        return (lambda x, *d: x.permute(*d))(o, 0, 2, 1, 3).reshape(B, Sq, Hq * Dh) @ wo

    def _B_ref(x, w_r, w_gate, w_up, w_down):
        B, S, D = x.shape
        C = 1
        r = x @ w_r
        idx = torch.argsort(-r, axis=-1)[:, :C]
        idx_e = (lambda x, n, axis: torch.repeat_interleave(x, n, dim=axis))(idx.reshape(B, C, 1), D, axis=2)
        x_sel = (lambda x, i, axis: torch.take_along_dim(x, i, dim=axis))(x, idx_e, axis=1)
        g = _silu(x_sel @ w_gate)
        u = x_sel @ w_up
        y = g * u @ w_down
        r_sel = _sigmoid((lambda x, i, axis: torch.take_along_dim(x, i, dim=axis))(r, idx, axis=1))
        y = y * r_sel.reshape(B, C, 1)
        b_off = (torch.arange(B) * S).reshape(B, 1)
        flat_idx = (idx + b_off).reshape(B * C)
        zero = (x * 0.0).reshape(B * S, D)
        upd = _scatter_add(zero, flat_idx, y.reshape(B * C, D), axis=0)
        return x + upd.reshape(B, S, D)
    x = A_x
    mod = (_silu(c) @ w_mod).reshape(c.shape[0], 6, 1, -1)
    sa, ca, ga, sb, cb, gb = (mod[:, 0].clone(), mod[:, 1].clone(), mod[:, 2].clone(), mod[:, 3].clone(), mod[:, 4].clone(), mod[:, 5].clone())
    h = _layernorm(x, axis=-1) * (1 + ca) + sa
    x = x + ga * _A_ref(h, A_k_cache, A_v_cache, A_wq, A_wo)
    h = _layernorm(x, axis=-1) * (1 + cb) + sb
    x = x + gb * _B_ref(h, B_w_r, B_w_gate, B_w_up, B_w_down)
    return x
```

```python
NAME = "adaLN_cond__gqa_block_cached__moe_arch_mod__prompt"
WS_MOD, WS_R, WS_YP, WS_H2, WS_X1, WS_SLAB = 0, 16384, 17408, 262144, 0x240000, 0x400000
XB = 1835008
WS_END = WS_SLAB + 8 * XB
class Asm:
    def __init__(s): s.L = []
    def __call__(s, *lines):
        for l in lines:
            for x in l.split("\n"):
                x = x.strip()
                if x: s.L.append("    " + x if not x.endswith(":") else x)
    def srd(s, d, karg, nbytes):
        s(f"s_load_dwordx2 s[{d}:{d+1}], s[0:1], {karg}")
        s.fin = getattr(s, "fin", []) + [(d, nbytes)]
    def srd_fin(s):
        s("s_waitcnt lgkmcnt(0)")
        for d, n in s.fin:
            s(f"s_and_b32 s{d+1}, s{d+1}, 0xffff", f"s_mov_b32 s{d+2}, {n}", f"s_mov_b32 s{d+3}, 0x00020000")
        s.fin = []
    def begin(s, k):
        s.L += [f".globl {k}", ".p2align 8", f".type {k},@function", f"{k}:"]
def desc(k, nv, acc, ns=102):
    return f""".p2align 6
.amdhsa_kernel {k}
  .amdhsa_next_free_vgpr {nv}
  .amdhsa_next_free_sgpr {ns}
  .amdhsa_accum_offset {acc}
  .amdhsa_group_segment_fixed_size 0
  .amdhsa_kernarg_size 120
  .amdhsa_user_sgpr_count 2
  .amdhsa_user_sgpr_kernarg_segment_ptr 1
  .amdhsa_system_sgpr_workgroup_id_x 1
.end_amdhsa_kernel
"""
def rbf(a, v):
    a(f"v_cvt_pk_bf16_f32 {v}, {v}, {v}", f"v_lshlrev_b32 {v}, 16, {v}")
```

```python
from common import *
from small import f2u, silu_bf, unpack8, CS
import os
DBG = os.environ.get("DBG")
KB0, KB1, VB0, VB1, XR = 0, 32768, 65536, 98304, 131072
LA = 7
NW0 = int(os.environ.get('NW0', '4'))
FB = float(os.environ.get('FB', '96'))
WG_ = 4
S_, P_, NM, Q_ = 32, 96, 112, 128
KRD, VRD = 240, 244
KD, VD = 8, 120
RING = 192
MF = "v_mfma_f32_16x16x32_bf16"
PST = os.environ.get("PST")
def pst(a, i):
    if PST: a(f"s_memrealtime s[{60+2*i}:{61+2*i}]", "s_waitcnt lgkmcnt(0)")
def stamp(a, i):
    if PST and 1 <= i <= 6: return
    if DBG: a(f"s_memrealtime s[{60+2*i}:{61+2*i}]", "s_waitcnt lgkmcnt(0)")
def cost(x):
    if isinstance(x, tuple): return 1
    return 2 if x.startswith("v_exp") else 4 if x.endswith(" lds") else 1
class Stream:
    def __init__(s, a): s.a = a; s.q = []; s.n = 0; s.done = -1
    def rd(s, it, idx, k):
        slot = RING + 4 * (idx % 16)
        kind, addr, off = it[0][k]
        if kind == 'b128': s.a(f"ds_read_b128 a[{slot}:{slot+3}], v{addr} offset:{off}")
        else: s.a(f"ds_read_b64_tr_b16 a[{slot+2*k}:{slot+2*k+1}], v{addr} offset:{off}")
        s.q.append(idx)
    def run(s, items, fill, nxt):
        allit = items + nxt
        for i, it in enumerate(items):
            idx = s.n + i
            for h in range(2):
                if i + LA < len(allit) and h < len(allit[i + LA][0]): s.rd(allit[i + LA], idx + LA, h)
                for f in fill.get(2 * i + h, []):
                    if isinstance(f, tuple): s.a(f[0]); s.q.append(idx + f[1])
                    else: s.a(f)
                if h == 0 and s.done < idx:
                    need = idx + min(WG_ - 1, len(items) - 1 - i)
                    pos = max([k for k, x in enumerate(s.q) if x <= need], default=-1)
                    s.a(f"s_waitcnt lgkmcnt({min(len(s.q) - pos - 1, 15)})")
                    s.q = s.q[pos + 1:]; s.done = need
                slot = RING + 4 * (idx % 16)
                s.a(it[1][h].format(A=f"a[{slot}:{slot+3}]"))
        s.n += len(items)
    def prime(s, items):
        for k in range(LA):
            for h in range(len(items[k][0])): s.rd(items[k], s.n + k, h)
    def state(s): return ([x - s.n for x in s.q], s.done - s.n, s.n % 16)
def r4(b, p="v"): return f"{p}[{b}:{b+3}]"
def qk_items(t):
    buf, sb = (t & 1) * 32768, S_ + 32 * (t & 1)
    it = []
    for kb in range(4):
        for s in range(8):
            m = []
            for rh in range(2):
                d = sb + kb * 8 + rh * 4
                m.append(f"{MF} {r4(d)}, {{A}}, {r4(Q_ + (s*2+rh)*4)}, {r4(NM+4*rh) if s == 0 else r4(d)}")
            it.append(([('b128', KRD + (s & 3), buf + kb * 8192 + (s >> 2) * 256)], m))
    return it
def pv_items(t):
    buf = (t & 1) * 32768
    it = []
    for q in range(2):
        for dt in range(16):
            rd = [('tr', VRD + (dt & 7), buf + (q * 32 + tt * 16) * 512 + (dt >> 3) * 256) for tt in range(2)]
            it.append((rd, [f"{MF} {r4((dt*2+rh)*4,'a')}, {{A}}, {r4(P_+(q*2+rh)*4)}, {r4((dt*2+rh)*4,'a')}" for rh in range(2)]))
    return it
def dma(t, isv):
    b = (VB0 if isv else 0) + (t & 1) * 32768
    s0, s1, srd = ("s34", "s36", "s[12:15]") if isv else ("s33", "s35", "s[8:11]")
    o = []
    for q in range(2):
        o.append(f"s_add_u32 m0, s44, {b + q*4096}")
        o.append(f"s_add_u32 {s1}, {s0}, 4096" if q == 0 else f"s_add_u32 {s0}, {s0}, 32768")
        for i in range(4): o.append(f"buffer_load_dwordx4 v{VD+i if isv else KD+4*q+i}, {srd}, {s1 if q else s0} offen offset:{i*1024} lds")
    return o
ONES, L_ = 252, (124, 16)
def softmax(t, kbs):
    sb = S_ + 32 * (t & 1); o = []; prev = None
    for kb in kbs:
        for rh in range(2):
            for p in range(2):
                r = sb + kb * 8 + rh * 4 + 2 * p
                o += [f"v_exp_f32 v{r}, v{r}"] + (prev or []) + [f"v_exp_f32 v{r+1}, v{r+1}"]
                prev = [f"v_cvt_pk_bf16_f32 v{P_+((kb>>1)*2+rh)*4+(kb&1)*2+p}, v{r}, v{r+1}"]
    return o, prev
def lsum(q): return [f"{MF} {r4(L_[rh])}, {r4(ONES)}, {r4(P_+(q*2+rh)*4)}, {r4(L_[rh])}" for rh in range(2)]
def spread(fill, lst, g0, g1):
    tot = sum(cost(x) for x in lst); n = g1 - g0; acc = 0
    for x in lst:
        g = g0 + min(n - 1, int(acc * n / tot)); fill.setdefault(g, []).append(x); acc += cost(x)
def maxchk(t):
    sb = S_ + 32 * (t & 1); o = []
    for rh in range(2):
        rs = [sb + kb * 8 + rh * 4 + e for kb in range(4) for e in range(4)]
        c = [f"v_max3_f32 v{22+rh}, v{rs[0]}, v{rs[1]}, v{rs[2]}"]
        for i in range(3, 15, 2): c.append(f"v_max3_f32 v{22+rh}, v{22+rh}, v{rs[i]}, v{rs[i+1]}")
        c.append(f"v_max_f32 v{22+rh}, v{22+rh}, v{rs[15]}")
        o.append(c)
    return [x for p in zip(*o) for x in p] + ["v_max_f32 v24, v22, v23"]
def xred(a, v, t, op):
    a(f"v_mov_b32 v{t}, v{v}", "s_nop 1", f"v_permlane32_swap_b32 v{v}, v{t}", "s_nop 1", f"{op} v{v}, v{v}, v{t}",
      f"v_mov_b32 v{t}, v{v}", "s_nop 1", f"v_permlane16_swap_b32 v{v}, v{t}", "s_nop 1", f"{op} v{v}, v{v}, v{t}")
def slow(a, t, first):
    sb = S_ + 32 * (t & 1)
    a("s_nop 15")
    for rh in range(2):
        xred(a, 22 + rh, 24, "v_max_f32")
        a(f"v_add_f32 v{22+rh}, 0x{f2u(FB):x}, v{22+rh}")
        if not first: a(f"v_max_f32 v{22+rh}, 0, v{22+rh}", f"v_sub_f32 v{20+rh}, 0, v{22+rh}", f"v_exp_f32 v{20+rh}, v{20+rh}", "s_nop 0")
    for i in range(32): a(f"v_sub_f32 v{sb+i}, v{sb+i}, v{22+((i>>2)&1)}")
    for i in range(8): a(f"v_sub_f32 v{NM+i}, v{NM+i}, v{22+(i>>2)}")
    if not first:
        for i in range(8): a(f"v_mul_f32 v{L_[i>>2]+(i&3)}, v{L_[i>>2]+(i&3)}, v{20+(i>>2)}")
        for i in range(0, 128, 4):
            for k in range(4): a(f"v_accvgpr_read_b32 v{24+k}, a{i+k}")
            for k in range(4): a(f"v_mul_f32 v{24+k}, v{24+k}, v{20+((i>>2)&1)}")
            for k in range(4): a(f"v_accvgpr_write_b32 a{i+k}, v{24+k}")
    a("s_nop 3")
def place_dma(fill, used, lst, g0, sp):
    k = 0; pend = []
    for x in lst:
        if x.endswith(" lds"):
            g = g0 + sp * k; k += 1
            fill.setdefault(g - 1, []).extend(pend); used[g - 1] += len(pend); pend = []
            fill.setdefault(g, []).append(x); used[g] += 4
        else: pend.append(x)
def iteration(a, st, j, w, last=0, wo_dma=None):
    o01, t01 = softmax(j, (0, 1)); o23, t23 = softmax(j, (2, 3))
    qa = qk_items(j + 1); pb = pv_items(j); nx = qk_items(j + 2)[:LA] if last == 0 else []
    fill = {}; used = [0] * 128
    seq = (qa + pb + nx)
    for i in range(64):
        for h in range(2):
            if i + LA < len(seq) and h < len(seq[i + LA][0]): used[2 * i + h] += 1
        if i % WG_ == 0: used[2 * i] += 1
    off = (0, 2, 3, 5)[w]
    if last < 2:
        fill[11] = ["s_waitcnt vmcnt(8)", "s_barrier"]; used[11] += 2
        place_dma(fill, used, dma(j + 1, 1), 14 + off, 6)
    if last == 0:
        fill[64 + 9] = ["s_waitcnt vmcnt(8)", "s_barrier"]; used[64 + 9] += 2
        place_dma(fill, used, dma(j + 3, 0), 64 + 12 + off, 6)
    for q in range(2):
        for rh in range(2):
            g = 64 + 32 * q + 3 + 2 * rh; fill.setdefault(g, []).append(lsum(q)[rh]); used[g] += 2
    queue = [(x, 0, 61) for x in o01] + [(o23[0], 0, 61)] + [(x, 0, 61) for x in t01] + [(x, 0, 94) for x in o23[1:]] + [("s_nop 0", 0, 94)] + [(x, 0, 94) for x in t23]
    if last < 2: queue += [(x, 70, 126) for x in maxchk(j + 1) + ["v_cmp_lt_f32 vcc, s41, v24"]]
    g = 0 if last < 2 else 64
    if last == 2:
        pre = [x for x, _, d in queue if d == 61]; queue = queue[len(pre):]
        a(*pre[:20]); a("s_waitcnt vmcnt(0)", "s_barrier"); a(*wo_dma); a(*pre[20:]); st.prime(pb)
    ne = nm = 0
    for x, lo, dl in queue:
        g = max(g, lo)
        if x.startswith("v_exp"):
            if last < 2: g = max(g, int(ne * 2.75))
            ne += 1
        elif lo: g = max(g, lo + int(nm * 2.7)); nm += 1
        g = min(range(g, g + 3), key=lambda k: (max(used[k] + cost(x), 2), k))
        assert g <= dl, (x, g, dl)
        fill.setdefault(g, []).append(x); used[g] += cost(x)
    if os.environ.get('SHOW'): print(j, w, used, sum(max(16, 8 + 4 * u) for u in used))
    if last < 2: st.run(qa, {k: v for k, v in fill.items() if k < 64}, pb[:LA])
    st.run(pb, {k - 64: v for k, v in fill.items() if k >= 64}, nx)
    if last < 2: a(f"s_cbranch_vccnz SLOW_{j}_{w}", f"BACK_{j}_{w}:")

def k1(a):
    a.begin(NAME + "_kernel")
    a("s_cmp_ge_u32 s2, 256", "s_cbranch_scc1 K1_END")
    a.srd(4, 0, XB); a.srd(8, 8, 8388608); a.srd(12, 16, 8388608); a.srd(16, 24, 448*8192); a.srd(20, 32, 4096*896); a.srd(24, 112, WS_END); a.srd(48, 88, 448*2688*2); a.srd(52, 80, 896); a.srd(56, 104, 256)
    a("v_lshrrev_b32 v1, 6, v0", "v_and_b32 v2, 63, v0", "s_nop 0", "v_readfirstlane_b32 s30, v1", "s_and_b32 s28, s2, 7", "s_lshr_b32 s29, s2, 3",
      "v_lshrrev_b32 v3, 4, v2", "v_and_b32 v4, 15, v2", "s_nop 2", "s_and_b32 s31, s30, 1", "s_lshr_b32 s32, s30, 1", "s_lshl_b32 s44, s30, 13",
      "s_lshl_b32 s33, s28, 20", "s_mov_b32 s34, s33", f"s_mov_b32 s41, 0x{f2u(32.0 - FB):x}")
    stamp(a, 0)
    a.srd_fin()
    WR = [XR, VB1, KB1, VB0]
    def wqdma(c):
        o = []
        for q in range(2):
            o.append(f"s_add_u32 m0, s44, {WR[c % 4] + q*4096}")
            o.append("s_add_u32 s38, s37, 32768" if q == 0 else "s_add_u32 s37, s37, 262144")
            for i in range(4): o.append(f"buffer_load_dwordx4 v{24+i}, s[16:19], {'s38' if q else 's37'} offen offset:{i*1024} lds")
        return o
    def emitX():
        a("s_lshl_b32 s3, s29, 6", "s_lshl_b32 s35, s32, 5", "s_add_u32 s3, s3, s35", "s_mul_i32 s3, s3, 896", "s_add_u32 s35, s3, 16*896", "v_mul_u32_u24 v5, 896, v4", "v_lshl_add_u32 v5, v3, 4, v5")
        for ks in range(14):
            for rh in range(2): a(f"buffer_load_dwordx4 {r4(128+(ks*2+rh)*4)}, v5, s[4:7], {'s35' if rh else 's3'} offen offset:{64*ks}")
        a("s_lshl_b32 s35, s30, 16", "s_lshl_b32 s36, s31, 3", "v_xor_b32 v6, s36, v2")
        for i in range(4): a(f"v_xor_b32 v{24+i}, {i<<1}, v6", f"v_lshlrev_b32 v{24+i}, 4, v{24+i}", f"v_add_u32 v{24+i}, {i*7168}, v{24+i}", f"v_add_u32 v{24+i}, s35, v{24+i}")
        a("s_lshl_b32 s37, s28, 10")
        for c in range(NW0): a(*wqdma(c))
    a("v_mov_b32 v6, 0", "buffer_load_dword v30, v6, s[24:27], 0 offen sc0 sc1", "buffer_load_dword v31, v6, s[56:59], 0 offen sc0 sc1")
    a("s_cmp_lg_u32 s2, 100", "s_cbranch_scc1 NOZERO", "v_lshlrev_b32 v6, 5, v0", "v_mov_b32 v32, 0", "v_mov_b32 v33, 0", "v_mov_b32 v34, 0", "v_mov_b32 v35, 0", f"s_mov_b32 s3, {WS_R}",
      "buffer_store_dwordx4 v[32:35], v6, s[24:27], s3 offen", "buffer_store_dwordx4 v[32:35], v6, s[24:27], s3 offen offset:16", "NOZERO:")
    a("s_cmp_ge_u32 s2, 42", "s_cbranch_scc1 NOPROD1", "v_and_b32 v6, 7, v0", "v_lshrrev_b32 v7, 3, v0", "s_lshl_b32 s3, s2, 7",
      "v_mul_u32_u24 v28, 14*5376, v7", "v_lshl_add_u32 v28, v6, 4, v28", "v_mul_u32_u24 v29, 28, v7")
    for i in range(14): a(f"buffer_load_ushort v{112+i}, v29, s[52:55], 0 offen offset:{2*i}")
    for i in range(14): a(f"buffer_load_dwordx4 {r4(32+4*i)}, v28, s[48:51], s3 offen", "s_add_u32 s3, s3, 5376")
    a("s_cmp_eq_u32 s30, 0", "s_cbranch_scc1 PW0", "NOPROD1:")
    emitX()
    a("s_cmp_ge_u32 s2, 42", "s_cbranch_scc1 NOPROD2", "s_waitcnt vmcnt(60)", "PW0:", "s_cmp_lg_u32 s30, 0", "s_cbranch_scc1 PW1", "s_waitcnt vmcnt(14)", "PW1:")
    for i in range(14):
        a(f"v_lshlrev_b32 v{112+i}, 16, v{112+i}"); silu_bf(a, f"v{112+i}", "v6")
    for j in range(8): a(f"v_mov_b32 v{96+j}, 0")
    a("s_cmp_lg_u32 s30, 0", "s_cbranch_scc1 PW2", "s_waitcnt vmcnt(0)", "PW2:")
    for i in range(14):
        unpack8(a, 32+4*i, 88)
        for j in range(8): a(f"v_fmac_f32 v{96+j}, v{88+j}, v{112+i}")
    a("v_lshlrev_b32 v6, 5, v0", "ds_write_b128 v6, v[96:99] offset:8192", "ds_write_b128 v6, v[100:103] offset:8208",
      "s_waitcnt lgkmcnt(0)", "s_barrier", "s_cmp_lg_u32 s30, 0", "s_cbranch_scc1 NOPROD2", "v_lshlrev_b32 v6, 2, v0")
    for i in range(32): a(f"ds_read_b32 v{32+i}, v6 offset:{8192+256*i}")
    a("s_waitcnt lgkmcnt(0)")
    for i in range(1, 32): a(f"v_add_f32 v32, v32, v{32+i}")
    rbf(a, "v32")
    a("s_mul_i32 s3, s2, 37", "s_lshr_b32 s3, s3, 8", "s_cmp_eq_u32 s3, 1", "s_cbranch_scc1 K0_ADD1", "s_cmp_eq_u32 s3, 4", "s_cbranch_scc0 K0_NOADD", "K0_ADD1:", "v_add_f32 v32, 1.0, v32")
    rbf(a, "v32")
    a("K0_NOADD:", "s_cmp_lt_u32 s3, 2", "s_cbranch_scc0 K0_NOSC", f"v_mul_f32 v32, 0x{CS:x}, v32", "K0_NOSC:",
      "s_lshl_b32 s3, s2, 8", "buffer_store_dword v32, v6, s[24:27], s3 offen sc0 sc1", "s_waitcnt vmcnt(0)", "v_mov_b32 v32, 1", "v_mov_b32 v6, 0",
      "v_cmp_eq_u32 vcc, 0, v0", "s_and_saveexec_b64 s[46:47], vcc", "buffer_store_byte v32, v6, s[56:59], s2 offen sc0 sc1", "s_mov_b64 exec, -1"); emitX(); a("NOPROD2:")
    a("v_lshrrev_b32 v28, 5, v2", "v_and_b32 v29, 31, v2", "v_lshlrev_b32 v6, 9, v28", "v_add_u32 v6, s44, v6")
    for i in range(8): a(f"v_add_u32 v7, {2*i}, v28", "v_xor_b32 v7, v7, v29", f"v_lshl_add_u32 v{KD+i}, v7, 4, v6")
    for i in range(4): a(f"v_add_u32 v7, {2*i}, v28", "v_lshlrev_b32 v7, 1, v7", "v_xor_b32 v7, v7, v29", f"v_lshl_add_u32 v{VD+i}, v7, 4, v6")
    a("v_lshlrev_b32 v7, 9, v4")
    for k in range(4): a(f"v_add_u32 v28, {4*k}, v3", "v_xor_b32 v28, v28, v4", f"v_lshl_add_u32 v{KRD+k}, v28, 4, v7")
    a("v_bfe_u32 v28, v2, 2, 2", "v_and_b32 v29, 3, v2", "v_and_b32 v30, 1, v3", "v_lshl_add_u32 v30, v30, 2, v28",
      "v_lshl_add_u32 v6, v3, 2, v28", "v_lshlrev_b32 v6, 9, v6", "v_lshl_add_u32 v6, v29, 3, v6", f"v_add_u32 v6, {VB0}, v6")
    for k in range(8): a(f"v_xor_b32 v7, {k}, v30", f"v_lshl_add_u32 v{VRD+k}, v7, 5, v6")
    a("v_lshl_add_u32 v6, v3, 3, v28", "v_lshlrev_b32 v6, 10, v6", "v_lshl_add_u32 v6, v29, 3, v6", "s_lshl_b32 s35, s31, 9", f"s_add_u32 s35, s35, {KB1}", "v_add_u32 v6, s35, v6")
    for k in range(8): a(f"v_xor_b32 v7, {k}, v30", f"v_lshl_add_u32 v{96+k}, v7, 5, v6", f"v_add_u32 v{104+k}, 65536, v{96+k}")
    a("s_cmp_lg_u32 s30, 0", "s_cbranch_scc1 POLLED", "s_waitcnt vmcnt(0)"); pst(a, 6); a("v_lshlrev_b32 v6, 2, v2", "v_cmp_eq_u32 vcc, 3, v2", "v_mov_b32 v7, 0x01010101", "v_mov_b32 v32, 0x0101", "v_cndmask_b32 v7, v7, v32, vcc",
      "POLL:", "buffer_load_dword v32, v6, s[56:59], 0 offen sc0 sc1", "s_waitcnt vmcnt(0)", "v_and_b32 v32, v32, v7", "v_cmp_eq_u32 vcc, v32, v7", "s_nop 3", "s_and_b32 s3, vcc_lo, 15", "s_cmp_eq_u32 s3, 15",
      "s_cbranch_scc1 POLLOK", "s_sleep 1", "s_branch POLL", "POLLOK:", "v_lshlrev_b32 v6, 4, v2"); pst(a, 3)
    for i in range(4): a(f"buffer_load_dwordx4 {r4(64+4*i)}, v6, s[24:27], 0 offen offset:{1024*i} sc0 sc1")
    a("POLLED:", f"s_waitcnt vmcnt({8*NW0})", "v_mov_b32 v31, 0x3f803f80")
    if not os.environ.get("NOPF"):
        a("v_lshlrev_b32 v6, 7, v2", "s_lshl_b32 s3, s29, 15", "s_lshl_b32 s35, s28, 20", "s_add_u32 s3, s3, s35", "s_cmp_eq_u32 s30, 1", "s_cbranch_scc0 PF2")
        for i in range(4): a(f"buffer_load_dword v{64+i}, v6, s[8:11], s3 offen", "s_add_u32 s3, s3, 8192")
        a("PF2:", "s_cmp_eq_u32 s30, 2", "s_cbranch_scc0 PF3")
        for i in range(4): a(f"buffer_load_dword v{64+i}, v6, s[12:15], s3 offen", "s_add_u32 s3, s3, 8192")
        a("PF3:", "s_cmp_eq_u32 s30, 3", "s_cbranch_scc0 PF4", "s_mul_i32 s3, s29, 14336", "s_mul_i32 s35, s28, 512*896", "s_add_u32 s3, s3, s35")
        for i in range(2): a(f"buffer_load_dword v{64+i}, v6, s[20:23], s3 offen", "s_add_u32 s3, s3, 8192")
        a("PF4:")
    for i in range(8): a(f"v_mov_b32 v{40+i}, 0")
    for i in range(112):
        rh = (i >> 2) & 1; k = 2 * rh + (i & 1)
        a(f"v_dot2_f32_bf16 v{40+k}, v{128+i}, v31, v{40+k}", f"v_dot2_f32_bf16 v{44+k}, v{128+i}, v{128+i}, v{44+k}")
    a("s_nop 3")
    for rh in range(2):
        m, q, o = 40 + 2 * rh, 44 + 2 * rh, 88 + 4 * rh
        a(f"v_add_f32 v{m}, v{m}, v{m+1}", f"v_add_f32 v{q}, v{q}, v{q+1}")
        xred(a, m, m + 1, "v_add_f32"); xred(a, q, q + 1, "v_add_f32")
        a(f"v_mul_f32 v{m}, 0x{f2u(1/448):x}, v{m}", f"v_mul_f32 v{q}, 0x{f2u(1/448):x}, v{q}", f"v_fma_f32 v{q}, -v{m}, v{m}, v{q}", f"v_max_f32 v{q}, 0, v{q}",
          f"v_add_f32 v{q}, 0x{f2u(1e-5):x}, v{q}", f"v_rsq_f32 v{o}, v{q}", "s_nop 0", f"v_mov_b32 v{o+1}, v{o}", f"v_mul_f32 v{o+2}, v{m}, v{o}", f"v_sub_f32 v{o+2}, 0, v{o+2}", f"v_mov_b32 v{o+3}, v{o+2}")
    for i in range(112):
        rh = (i >> 2) & 1; t = 80 + 2 * (i & 3); x = 128 + i
        a(f"v_lshlrev_b32 v{t}, 16, v{x}", f"v_and_b32 v{t+1}, 0xffff0000, v{x}", f"v_pk_fma_f32 v[{t}:{t+1}], v[{t}:{t+1}], v[{88+4*rh}:{89+4*rh}], v[{90+4*rh}:{91+4*rh}]", f"v_cvt_pk_bf16_f32 v{x}, v{t}, v{t+1}")
    pst(a, 4)
    a("s_cmp_lg_u32 s30, 0", "s_cbranch_scc1 NOCW", "s_waitcnt vmcnt(0)", "v_lshlrev_b32 v6, 4, v2")
    for i in range(4): a(f"ds_write_b128 v6, {r4(64+4*i)} offset:{1024*i}")
    a("NOCW:", "s_waitcnt lgkmcnt(0) vmcnt(0)", "s_barrier", "v_lshlrev_b32 v6, 5, v3")
    pst(a, 5)
    for c in range(NW0, 4): a(*wqdma(c))
    def crd(ks):
        b = 48
        return [f"ds_read_b128 {r4(b)}, v6 offset:{1792+128*ks}", f"ds_read_b128 {r4(b+4)}, v6 offset:{1792+128*ks+16}",
                f"ds_read_b128 {r4(b+8)}, v6 offset:{128*ks}", f"ds_read_b128 {r4(b+12)}, v6 offset:{128*ks+16}"]
    def norm(ks):
        b = 48; o = []
        for rh in range(2):
            for i in range(4):
                x = 128 + (ks * 2 + rh) * 4 + i; t = 80 + 2 * (i & 3)
                o += [f"v_lshlrev_b32 v{t}, 16, v{x}", f"v_and_b32 v{t+1}, 0xffff0000, v{x}", f"v_fma_f32 v{t}, v{t}, v{b+2*i}, v{b+8+2*i}",
                      f"v_fma_f32 v{t+1}, v{t+1}, v{b+2*i+1}, v{b+9+2*i}", f"v_cvt_pk_bf16_f32 v{x}, v{t}, v{t+1}"]
        return o
    a(*crd(0)); a("s_waitcnt lgkmcnt(0)"); a(*norm(0))
    stamp(a, 1)
    st = Stream(a)
    def wq_items(c):
        sl = c % 4; base = 104 if sl < 2 else 96; off = 32768 if sl in (0, 3) else 0
        it = []
        for t in range(16):
            rd = [('tr', base + (t & 7), off + tt * 4096 + (t >> 3) * 256) for tt in range(2)]
            it.append((rd, [f"{MF} {r4((t*2+rh)*4,'a')}, {{A}}, {r4(128+(c*2+rh)*4)}, {'0' if c == 0 else r4((t*2+rh)*4,'a')}" for rh in range(2)]))
        return it
    def dmak0():
        return ["s_sub_u32 s33, s33, 65536"] + dma(0, 0) + ["s_add_u32 s33, s33, 32768"]
    a("s_add_u32 s33, s33, 32768")
    st.prime(wq_items(0))
    for c in range(14):
        f = {}
        if c < 13:
            for k, x in enumerate(crd(c + 1)): f.setdefault(k, []).append((x, 4))
            spread(f, norm(c + 1), 9, 31)
            f.setdefault(10, []).extend([f"s_waitcnt vmcnt({16 if c == 0 else 8})", "s_barrier"])
            if 1 <= c <= 10: spread(f, wqdma(c + 3), 12, 30)
            if c == 11: spread(f, dma(1, 0), 12, 30)
            if c == 12: spread(f, dmak0() + dma(0, 1), 12, 31)
        st.run(wq_items(c), f, wq_items(c + 1)[:LA] if c < 13 else [])
    stamp(a, 2)
    a("s_nop 15")
    for s in range(8):
        for rh in range(2):
            q = Q_ + (s * 2 + rh) * 4
            for u in range(2):
                for k in range(4): a(f"v_accvgpr_read_b32 v{32+4*u+k}, a{((2*s+u)*2+rh)*4+k}")
            for k in range(4): a(f"v_cvt_pk_bf16_f32 v{q+k}, v{32+2*k}, v{33+2*k}")
        for rh in range(2):
            q = Q_ + (s * 2 + rh) * 4
            a("s_nop 0", f"v_permlane32_swap_b32 v{q}, v{q+2}", f"v_permlane32_swap_b32 v{q+1}, v{q+3}", "s_nop 1", f"v_permlane16_swap_b32 v{q}, v{q+2}", f"v_permlane16_swap_b32 v{q+1}, v{q+3}")
    for i in range(128): a(f"v_accvgpr_write_b32 a{i}, 0")
    for i in range(8): a(f"v_mov_b32 v{NM+i}, 0")
    for i in range(8): a(f"v_mov_b32 v{L_[i>>2]+(i&3)}, 0")
    for i in range(4): a(f"v_mov_b32 v{ONES+i}, 0x3f803f80")
    st.n = (st.n + 15) // 16 * 16; st.done = st.n - 1; st.q = []
    a("s_waitcnt vmcnt(8)", "s_barrier")
    st.prime(qk_items(0))
    st.run(qk_items(0), {}, qk_items(1)[:LA])
    a("s_barrier"); a(*dma(2, 0))
    a("s_nop 7"); a(*maxchk(0)); slow(a, 0, True)
    stamp(a, 3)
    a("s_mov_b32 s40, 15")
    NV = int(os.environ.get("NV", "1"))
    for w in range(1, NV): a(f"s_cmp_eq_u32 s30, {w}", f"s_cbranch_scc1 LOOP{w}")
    s0 = st.state()
    for w in range(NV):
        a(f"LOOP{w}:")
        iteration(a, st, 0, w); iteration(a, st, 1, w)
        assert st.state() == s0, (st.state(), s0)
        a("s_sub_u32 s40, s40, 1", "s_cmp_lg_u32 s40, 0", f"s_cbranch_scc1 LOOP{w}")
        if w < NV - 1: a("s_branch LOOP_END")
    a("LOOP_END:")
    stamp(a, 4)
    OR = [KB0, KB1, XR, VB0, VB1]
    a("s_mul_i32 s35, s30, 448")
    for i in range(7):
        a("v_add_u32 v6, s35, v2", f"v_add_u32 v6, {64*i}, v6", "v_mul_u32_u24 v7, 9363, v6", "v_lshrrev_b32 v7, 20, v7", "v_and_b32 v7, 3, v7", "v_lshlrev_b32 v7, 5, v7",
          "v_lshlrev_b32 v6, 4, v6", "v_xor_b32 v6, v6, v7", f"v_subrev_u32 v{8+i}, {(i&3)*1024}, v6")
    a("s_mul_i32 s37, s28, 512*896", "s_mul_i32 s45, s30, 7168")
    def wodma(c):
        o = []
        for q in range(2):
            o += [f"s_add_u32 m0, s45, {OR[c % 5] + q*4096}", "s_nop 0"]
            for i in range(4 if q == 0 else 3): o.append(f"buffer_load_dwordx4 v{8+4*q+i}, s[20:23], s37 offen offset:{i*1024} lds")
        return o + ["s_add_u32 s37, s37, 28672"]
    iteration(a, st, 30, 0, 1)
    iteration(a, st, 31, 0, 2, wodma(0) + wodma(1) + wodma(2))
    stamp(a, 5)
    for rh in range(2):
        a("s_nop 7", f"v_rcp_f32 v{20+rh}, v{L_[rh]}")
    a("s_lshl_b32 s35, s30, 14", f"s_add_u32 s35, s35, {VB0}", "v_lshlrev_b32 v6, 4, v2", "v_add_u32 v7, s35, v6",
      "s_lshl_b32 s35, s32, 15", f"s_add_u32 s35, s35, {VB0}", "v_add_u32 v6, s35, v6", "s_nop 7", "s_barrier")
    for s in range(8):
        for rh in range(2):
            b = 32 + 12 * rh
            for u in range(2):
                for k in range(4): a(f"v_accvgpr_read_b32 v{b+4*u+k}, a{((2*s+u)*2+rh)*4+k}")
            for k in range(8): a(f"v_mul_f32 v{b+k}, v{b+k}, v{20+rh}")
            for k in range(4): a(f"v_cvt_pk_bf16_f32 v{b+8+k}, v{b+2*k}, v{b+2*k+1}")
            a(f"ds_write_b128 v7, {r4(b+8)} offset:{1024*(s*2+rh)}")
    a("v_bfe_u32 v28, v2, 2, 2", "v_and_b32 v29, 3, v2", "v_and_b32 v30, 1, v3", "v_lshl_add_u32 v30, v30, 2, v28", "v_lshrrev_b32 v30, 1, v30",
      "v_lshl_add_u32 v24, v3, 2, v28", "v_mul_u32_u24 v24, 896, v24", "v_lshl_add_u32 v24, v29, 3, v24", "s_mul_i32 s35, s31, 14")
    for k in range(4):
        a(f"s_add_u32 s36, s35, {k}", "s_and_b32 s38, s36, 3", "s_lshr_b32 s36, s36, 2", "s_lshl_b32 s36, s36, 7", "v_xor_b32 v25, s38, v30", "v_lshl_add_u32 v25, v25, 5, v24",
          f"v_add_u32 v{240+k}, s36, v25", f"v_add_u32 v{244+k}, {VB0}, v{240+k}", f"v_add_u32 v{248+k}, {XR}, v{240+k}")
    a("s_waitcnt lgkmcnt(0) vmcnt(14)", "s_barrier")
    for ks in range(32): a(f"ds_read_b128 {r4(4*ks,'a')}, v6 offset:{1024*ks}")
    a("s_waitcnt lgkmcnt(0)")
    def wo_items(c):
        base, off = {0: (240, 0), 1: (240, 32768), 2: (248, 0), 3: (244, 0), 4: (244, 32768)}[c % 5]
        it = []
        for nt in range(14):
            rd = [('tr', base + (nt & 3), off + tt * 16 * 896 + (nt >> 2) * 128) for tt in range(2)]
            it.append((rd, [f"{MF} {r4(32+(nt*2+rh)*4)}, {{A}}, {r4((c*2+rh)*4,'a')}, {'0' if c == 0 else r4(32+(nt*2+rh)*4)}" for rh in range(2)]))
        return it
    stamp(a, 6)
    st.done = st.n - 1; st.q = []
    st.prime(wo_items(0))
    for c in range(16):
        f = {}
        if c < 15:
            f[8] = [f"s_waitcnt vmcnt({ {0: 7, 13: 7, 14: 0}.get(c, 14) })", "s_barrier"]
            if c == 0: spread(f, wodma(3) + wodma(4), 10, 27)
            if 1 <= c <= 11: spread(f, wodma(c + 4), 10, 26)
        st.run(wo_items(c), f, wo_items(c + 1)[:LA] if c < 15 else [])
    stamp(a, 7)
    a("s_lshl_b32 s35, s29, 1", "s_add_u32 s35, s35, s32", "s_mul_i32 s35, s35, 28672", f"s_mul_i32 s36, s28, {XB}", "s_add_u32 s35, s35, s36", "s_mul_i32 s36, s31, 14336",
      "s_add_u32 s35, s35, s36", f"s_add_u32 s35, s35, {WS_SLAB}", "v_lshlrev_b32 v6, 4, v2", "s_nop 15")
    for nt in range(14):
        d = 32 + 8 * nt; o = 160 + 4 * nt
        for k in range(4): a(f"v_cvt_pk_bf16_f32 v{o+k}, v{d+2*k}, v{d+2*k+1}")
        a("s_nop 1", f"v_permlane16_swap_b32 v{o}, v{o+2}", f"v_permlane16_swap_b32 v{o+1}, v{o+3}", f"buffer_store_dwordx4 {r4(o)}, v6, s[24:27], s35 offen offset:{1024*(nt&3)}")
        if nt & 3 == 3: a("s_add_u32 s35, s35, 4096")
    if DBG:
        a("s_waitcnt vmcnt(0)"); stamp(a, 8)
        a("v_mov_b32 v2, s60", "v_mov_b32 v3, s76", "v_mov_b32 v4, s62", "v_mov_b32 v5, s68", "s_lshl_b32 s3, s2, 6", "s_lshl_b32 s35, s30, 4", "s_add_u32 s3, s3, s35", "s_add_u32 s3, s3, 0x8000", "v_mov_b32 v1, 0",
          "buffer_store_dwordx4 v[2:5], v1, s[24:27], s3 offen")
        a("s_load_dwordx2 s[52:53], s[0:1], 104", "s_waitcnt lgkmcnt(0)", "s_mov_b32 s54, 256", "s_mov_b32 s55, 0x20000", f"s_cmp_lg_u32 s2, {DBG}", "s_cbranch_scc1 K1_END", "s_cmp_lg_u32 s30, 0", "s_cbranch_scc1 K1_END", "v_mov_b32 v1, 0")
        for i in range(1, 9): a(f"s_sub_u32 s56, s{60+2*i}, s60", "v_mov_b32 v2, s56", f"buffer_store_dword v2, v1, s[52:55], 0 offen offset:{64+4*i}")
    a("K1_END:", "s_endpgm")
    for j, w in [(j, w) for j in (0, 1) for w in range(NV)] + [(30, 0)]:
        a(f"SLOW_{j}_{w}:"); slow(a, j + 1, False); a(f"s_branch BACK_{j}_{w}")
```

```python
from common import *
import struct
def f2u(f): return struct.unpack("<I", struct.pack("<f", f))[0]
CS = f2u(1.4426950408889634 / 16.0)
LOG2E = f2u(1.4426950408889634)
def silu_bf(a, v, t):
    a(f"v_mul_f32 {t}, 0x{f2u(-1.4426950408889634):x}, {v}", f"v_exp_f32 {t}, {t}", "s_nop 0", f"v_add_f32 {t}, 1.0, {t}",
      f"v_rcp_f32 {t}, {t}", "s_nop 0", f"v_mul_f32 {v}, {v}, {t}")
    rbf(a, v)
def unpack8(a, src, dst):
    for i in range(4):
        a(f"v_lshlrev_b32 v{dst+2*i}, 16, v{src+i}", f"v_and_b32 v{dst+2*i+1}, 0xffff0000, v{src+i}")

def k0(a):
    a.begin("k0_kernel")
    a("s_cmp_ge_u32 s2, 42", "s_cbranch_scc1 K0_END")
    a.srd(4, 88, 448*2688*2); a.srd(8, 80, 896); a.srd(12, 112, WS_END); a.srd_fin()
    a("v_and_b32 v1, 7, v0", "v_lshrrev_b32 v2, 3, v0", "s_lshl_b32 s3, s2, 7",
      "v_mul_u32_u24 v3, 14*5376, v2", "v_lshl_add_u32 v3, v1, 4, v3", "v_mul_u32_u24 v4, 28, v2")
    a("s_mov_b32 s16, s3")
    for i in range(14):
        a(f"buffer_load_dwordx4 v[{32+4*i}:{35+4*i}], v3, s[4:7], s16 offen", "s_add_u32 s16, s16, 5376")
    for i in range(14):
        a(f"buffer_load_ushort v{8+i}, v4, s[8:11], 0 offen offset:{2*i}")
    a("s_waitcnt vmcnt(0)")
    for i in range(14):
        a(f"v_lshlrev_b32 v{8+i}, 16, v{8+i}"); silu_bf(a, f"v{8+i}", "v5")
    for j in range(8): a(f"v_mov_b32 v{96+j}, 0")
    for i in range(14):
        unpack8(a, 32+4*i, 88)
        for j in range(8): a(f"v_fmac_f32 v{96+j}, v{88+j}, v{8+i}")
    a("v_lshlrev_b32 v5, 5, v0", "ds_write_b128 v5, v[96:99]", "ds_write_b128 v5, v[100:103] offset:16",
      "s_waitcnt lgkmcnt(0)", "s_barrier", "v_cmp_gt_u32 vcc, 64, v0", "s_and_saveexec_b64 s[20:21], vcc", "s_cbranch_execz K0_END",
      "v_lshlrev_b32 v5, 2, v0")
    for i in range(32): a(f"ds_read_b32 v{32+i}, v5 offset:{256*i}")
    a("s_waitcnt lgkmcnt(0)")
    for i in range(1, 32): a(f"v_add_f32 v32, v32, v{32+i}")
    rbf(a, "v32")
    a("s_mul_i32 s16, s2, 37", "s_lshr_b32 s16, s16, 8",
      "s_cmp_eq_u32 s16, 1", "s_cbranch_scc1 K0_ADD1", "s_cmp_eq_u32 s16, 4", "s_cbranch_scc0 K0_NOADD", "K0_ADD1:",
      "v_add_f32 v32, 1.0, v32")
    rbf(a, "v32")
    a("K0_NOADD:", "s_cmp_lt_u32 s16, 2", "s_cbranch_scc0 K0_NOSC", f"v_mul_f32 v32, 0x{CS:x}, v32", "K0_NOSC:",
      "s_lshl_b32 s3, s2, 8", f"buffer_store_dword v32, v5, s[12:15], s3 offen", "K0_END:", "s_endpgm")

def k2(a):
    a.begin("k2_kernel")
    a("s_cmp_ge_u32 s2, 256", "s_cbranch_scc1 K2_END")
    a.srd(4, 0, XB); a.srd(8, 48, 896); a.srd(12, 112, WS_END); a.srd(16, 96, XB); a.srd(36, 104, 256); a.srd(40, 56, 448*1792*2); a.srd(44, 64, 448*1792*2); a.srd(48, 72, 448*1792*2); a.srd_fin()
    a("v_and_b32 v1, 7, v0", "v_lshrrev_b32 v2, 3, v0",
      "s_lshr_b32 s20, s2, 2", "s_mul_i32 s20, s20, 28672", "s_and_b32 s21, s2, 3", "s_lshl_b32 s21, s21, 7",
      "s_add_u32 s20, s20, s21", f"s_add_u32 s20, s20, {WS_SLAB}",
      "v_lshlrev_b32 v3, 9, v2", "v_lshl_add_u32 v3, v1, 4, v3",
      "v_add_u32 v4, 16384, v3",
      "v_cmp_gt_u32 vcc, 24, v2", "v_mov_b32 v9, 0x7ff00000", "s_nop 1", "v_cndmask_b32 v4, v9, v4, vcc",
      "s_lshl_b32 s22, s2, 3", "v_add_u32 v5, s22, v1",
      "v_mul_u32_u24 v6, 896, v5", "v_lshl_add_u32 v6, v2, 4, v6", "v_add_u32 v7, 512, v6", "v_cndmask_b32 v7, v9, v7, vcc",
      "v_lshlrev_b32 v8, 5, v2", "v_add_u32 v10, 1024, v8", "v_cndmask_b32 v10, v9, v10, vcc",
      "v_lshlrev_b32 v11, 4, v2", "v_add_u32 v12, 512, v11", "v_cndmask_b32 v12, v9, v12, vcc")
    for g in range(8):
        a(f"buffer_load_dwordx4 v[{32+8*g}:{35+8*g}], v3, s[12:15], s20 offen", f"buffer_load_dwordx4 v[{36+8*g}:{39+8*g}], v4, s[12:15], s20 offen",
          f"s_add_u32 s20, s20, {XB}")
    a("buffer_load_dwordx4 v[96:99], v6, s[4:7], 0 offen", "buffer_load_dwordx4 v[100:103], v7, s[4:7], 0 offen",
      "buffer_load_dwordx4 v[104:107], v11, s[8:11], 0 offen", "buffer_load_dwordx4 v[108:111], v12, s[8:11], 0 offen")
    for n, sec in enumerate((2, 4, 3, 5)):
        b = 112 + 16*n
        a(f"s_mov_b32 s21, {sec*1792}")
        for c, vo in ((0, "v8"), (1, "v10")):
            a(f"buffer_load_dwordx4 v[{b+8*c}:{b+8*c+3}], {vo}, s[12:15], s21 offen", f"buffer_load_dwordx4 v[{b+8*c+4}:{b+8*c+7}], {vo}, s[12:15], s21 offen offset:16")
    GA, A2, B2, GB = 112, 128, 144, 160
    ACC, T = 176, 192
    a("s_waitcnt vmcnt(20)")
    for g in range(8):
        for c in range(2):
            if g == 0: unpack8(a, 32+4*c, ACC+8*c)
            else:
                unpack8(a, 32+8*g+4*c, T)
                for j in range(8): a(f"v_add_f32 v{ACC+8*c+j}, v{ACC+8*c+j}, v{T+j}")
    a("s_waitcnt vmcnt(0)")
    unpack8(a, 96, T); unpack8(a, 100, T+8)
    a("v_mov_b32 v14, 0", "v_mov_b32 v15, 0")
    for j in range(16):
        v = f"v{ACC+j}"
        rbf(a, v); a(f"v_mul_f32 {v}, {v}, v{GA+j}"); rbf(a, v); a(f"v_add_f32 {v}, {v}, v{T+j}"); rbf(a, v)
        a(f"v_add_f32 v14, v14, {v}", f"v_fmac_f32 v15, {v}, {v}")
    a("v_lshlrev_b32 v13, 3, v0", "ds_write_b64 v13, v[14:15]", "v_lshlrev_b32 v16, 3, v1", "s_waitcnt lgkmcnt(0)", "s_barrier")
    for i in range(32): a(f"ds_read_b64 v[{32+2*i}:{33+2*i}], v16 offset:{64*i}")
    a("s_waitcnt lgkmcnt(0)")
    for i in range(1, 32): a(f"v_add_f32 v32, v32, v{32+2*i}", f"v_add_f32 v33, v33, v{33+2*i}")
    a(f"v_mul_f32 v32, 0x{f2u(1/448):x}, v32", f"v_mul_f32 v33, 0x{f2u(1/448):x}, v33", "v_fma_f32 v33, -v32, v32, v33", "v_max_f32 v33, 0, v33",
      f"v_add_f32 v33, 0x{f2u(1e-5):x}, v33", "v_rsq_f32 v33, v33", "s_nop 0", "v_mul_f32 v32, v32, v33")
    unpack8(a, 104, 40); unpack8(a, 108, 48)
    a("v_mov_b32 v14, 0")
    H = 56
    for j in range(16):
        h = f"v{H+j}"
        a(f"v_fma_f32 {h}, v{ACC+j}, v33, -v32", f"v_fma_f32 {h}, {h}, v{A2+j}, v{B2+j}"); rbf(a, h)
        a(f"v_fmac_f32 v14, {h}, v{40+j}", f"v_mul_f32 v{T+j}, {h}, v{GB+j}"); rbf(a, f"v{T+j}")
        a(f"v_add_f32 v{T+j}, v{T+j}, v{ACC+j}")
    a("v_lshlrev_b32 v13, 2, v0", "ds_write_b32 v13, v14 offset:4096")
    for j in range(8):
        a(f"v_cvt_pk_bf16_f32 v{72+j}, v{T+2*j}, v{T+2*j+1}", f"v_cvt_pk_bf16_f32 v{80+j}, v{H+2*j}, v{H+2*j+1}", f"v_cvt_pk_bf16_f32 v{88+j}, v{ACC+2*j}, v{ACC+2*j+1}")
    a(f"s_mov_b32 s20, {WS_H2}", f"s_mov_b32 s21, {WS_X1}",
      "buffer_store_dwordx4 v[72:75], v6, s[16:19], 0 offen sc0 sc1", "buffer_store_dwordx4 v[76:79], v7, s[16:19], 0 offen sc0 sc1",
      "buffer_store_dwordx4 v[80:83], v6, s[12:15], s20 offen sc0 sc1", "buffer_store_dwordx4 v[84:87], v7, s[12:15], s20 offen sc0 sc1",
      "buffer_store_dwordx4 v[88:91], v6, s[12:15], s21 offen sc0 sc1", "buffer_store_dwordx4 v[92:95], v7, s[12:15], s21 offen sc0 sc1",
      "s_waitcnt lgkmcnt(0) vmcnt(0)", "s_barrier", "v_cmp_gt_u32 vcc, 8, v0", "s_and_saveexec_b64 s[24:25], vcc", "s_cbranch_execz K2_P2",
      "v_lshlrev_b32 v16, 2, v1")
    for i in range(32): a(f"ds_read_b32 v{96+i}, v16 offset:{4096+32*i}")
    a("s_waitcnt lgkmcnt(0)")
    for i in range(1, 32): a(f"v_add_f32 v96, v96, v{96+i}")
    rbf(a, "v96")
    a("v_ashrrev_i32 v97, 31, v96", "v_or_b32 v97, 0x80000000, v97", "v_xor_b32 v96, v96, v97", "v_and_b32 v96, 0xffff0000, v96",
      "v_sub_u32 v97, 0x87ff, v5", "v_or_b32 v96, v96, v97", "s_nop 1", "v_readlane_b32 s26, v96, 0")
    for i in range(1, 8): a(f"v_readlane_b32 s27, v96, {i}", "s_nop 3", "s_max_u32 s26, s26, s27")
    a("v_cmp_eq_u32 vcc, 0, v0", "s_and_b64 exec, exec, vcc", "v_mov_b32 v96, s26", "s_lshl_b32 s27, s2, 2", f"s_add_u32 s27, s27, {WS_R}", "v_mov_b32 v97, 0",
      "buffer_store_dword v96, v97, s[12:15], s27 offen sc0 sc1",
      "K2_P2:", "s_mov_b64 exec, -1", "s_cmp_ge_u32 s2, 56", "s_cbranch_scc1 K2_END")
    k3(a)

def k3(a):
    a("v_and_b32 v20, 3, v0", "v_lshrrev_b32 v21, 2, v0", "v_mul_u32_u24 v22, 7*3584, v21", "v_lshl_add_u32 v22, v20, 4, v22", "s_lshl_b32 s24, s2, 6")
    for i in range(7):
        a(f"buffer_load_dwordx4 v[{32+4*i}:{35+4*i}], v22, s[40:43], s24 offen", f"buffer_load_dwordx4 v[{60+4*i}:{63+4*i}], v22, s[44:47], s24 offen", "s_add_u32 s24, s24, 3584")
    a("v_mul_u32_u24 v25, 7*896, v0", "s_lshl_b32 s24, s2, 4")
    for i in range(7): a(f"buffer_load_dwordx4 v[{88+4*i}:{91+4*i}], v25, s[48:51], s24 offen", "s_add_u32 s24, s24, 896")
    a("v_and_b32 v26, 7, v0", "v_lshlrev_b32 v23, 2, v26", "s_lshl_b32 s25, s2, 5", f"s_add_u32 s24, s25, {5*1792}", "buffer_load_dword v116, v23, s[12:15], s24 offen",
      "v_and_b32 v2, 63, v0", "v_lshlrev_b32 v2, 4, v2", f"s_mov_b32 s24, {WS_R}",
      "K2_SPIN:", "buffer_load_dwordx4 v[4:7], v2, s[12:15], s24 offen sc0 sc1", "s_waitcnt vmcnt(0)", "v_and_b32 v8, v4, v5", "v_and_b32 v9, v6, v7", "v_and_b32 v8, v8, v9", "v_and_b32 v8, 0x8000, v8",
      "v_cmp_ne_u32 vcc, 0, v8", "s_nop 3", "s_cmp_eq_u64 vcc, -1", "s_cbranch_scc1 K2_GO", "s_sleep 1", "s_branch K2_SPIN", "K2_GO:",
      "v_max3_u32 v4, v4, v5, v6", "v_max_u32 v4, v4, v7")
    for sw in ("v_permlane32_swap_b32", "v_permlane16_swap_b32"):
        a("v_mov_b32 v5, v4", "s_nop 1", f"{sw} v4, v5", "s_nop 1", "v_max_u32 v4, v4, v5")
    for r in (8, 4, 2, 1): a("s_nop 1", f"v_max_u32_dpp v4, v4, v4 row_ror:{r} row_mask:0xf bank_mask:0xf")
    a("s_nop 1", "v_readfirstlane_b32 s30, v4", "s_nop 3", "s_and_b32 s31, s30, 0x7ff", "s_sub_u32 s31, 2047, s31", "s_mul_i32 s32, s31, 896",
      f"s_add_u32 s33, s32, {WS_H2}", "v_mul_u32_u24 v27, 14, v21")
    for i in range(7): a(f"buffer_load_ushort v{12+i}, v27, s[12:15], s33 offen offset:{2*i} sc0 sc1")
    a("s_lshl_b32 s25, s2, 4", "s_add_u32 s32, s32, s25", "s_add_u32 s33, s33, s25", f"s_add_u32 s34, s32, {WS_X1}", "v_lshlrev_b32 v24, 1, v26",
      "buffer_load_ushort v117, v24, s[12:15], s33 offen sc0 sc1", "buffer_load_ushort v118, v24, s[12:15], s34 offen sc0 sc1", "s_mov_b32 s35, 0xffff0000")
    for j in range(16): a(f"v_mov_b32 v{128+j}, 0")
    a("s_waitcnt vmcnt(2)")
    def fm(b, acc, x):
        for i in range(4): a(f"v_lshlrev_b32 v120, 16, v{b+i}", f"v_and_b32 v121, s35, v{b+i}", f"v_fmac_f32 v{acc+2*i}, v120, {x}", f"v_fmac_f32 v{acc+2*i+1}, v121, {x}")
    for i in range(7):
        a(f"v_lshlrev_b32 v{12+i}, 16, v{12+i}"); fm(32+4*i, 128, f"v{12+i}"); fm(60+4*i, 136, f"v{12+i}")
    a("v_lshlrev_b32 v28, 8, v21", "v_lshl_add_u32 v28, v20, 5, v28", "ds_write_b128 v28, v[128:131]", "ds_write_b128 v28, v[132:135] offset:16",
      "ds_write_b128 v28, v[136:139] offset:128", "ds_write_b128 v28, v[140:143] offset:144", "s_waitcnt lgkmcnt(0)", "s_barrier",
      "v_and_b32 v29, 63, v0", "v_lshrrev_b32 v30, 6, v0", "v_lshlrev_b32 v31, 12, v30", "v_lshl_add_u32 v31, v29, 2, v31")
    for i in range(16): a(f"ds_read_b32 v{128+i}, v31 offset:{256*i}")
    a("s_waitcnt lgkmcnt(0)")
    for i in range(1, 16): a(f"v_add_f32 v128, v128, v{128+i}")
    a("v_lshlrev_b32 v31, 2, v0", "ds_write_b32 v31, v128 offset:16384", "s_waitcnt lgkmcnt(0)", "s_barrier",
      "v_cmp_gt_u32 vcc, 32, v0", "s_and_saveexec_b64 s[26:27], vcc", "s_cbranch_execz K3_PUB")
    for i in range(4): a(f"ds_read_b32 v{128+i}, v31 offset:{16384+256*i}", f"ds_read_b32 v{132+i}, v31 offset:{16384+128+256*i}")
    a("s_waitcnt lgkmcnt(0)")
    for i in range(1, 4): a(f"v_add_f32 v128, v128, v{128+i}", f"v_add_f32 v132, v132, v{132+i}")
    rbf(a, "v128"); rbf(a, "v132"); silu_bf(a, "v128", "v129"); a("v_mul_f32 v128, v128, v132"); rbf(a, "v128")
    a("v_or_b32 v128, 1, v128", "s_lshl_b32 s25, s2, 7", f"s_add_u32 s25, s25, {WS_YP}", "buffer_store_dword v128, v31, s[12:15], s25 offen sc0 sc1",
      "K3_PUB:", "s_mov_b64 exec, -1", "v_mul_u32_u24 v2, 28, v0", f"s_mov_b32 s24, {WS_YP}",
      "s_and_b32 s36, s30, 0xffff0000", "s_cmp_lt_i32 s36, 0", "s_cbranch_scc1 K4_POS", "s_not_b32 s36, s36", "s_and_b32 s36, s36, 0xffff0000", "s_branch K4_RD",
      "K4_POS:", "s_and_b32 s36, s36, 0x7fffffff", "K4_RD:", "v_mov_b32 v16, s36",
      f"v_mul_f32 v16, 0x{f2u(-1.4426950408889634):x}, v16", "v_exp_f32 v16, v16", "s_nop 0", "v_add_f32 v16, 1.0, v16", "v_rcp_f32 v16, v16", "s_nop 0")
    rbf(a, "v16")
    a("K3_SPIN:", "buffer_load_dwordx4 v[4:7], v2, s[12:15], s24 offen sc0 sc1", "buffer_load_dwordx3 v[8:10], v2, s[12:15], s24 offen offset:16 sc0 sc1", "s_waitcnt vmcnt(0)",
      "v_and_b32 v11, v4, v5", "v_and_b32 v12, v6, v7", "v_and_b32 v13, v8, v9", "v_and_b32 v11, v11, v12", "v_and_b32 v13, v13, v10", "v_and_b32 v11, v11, v13", "v_and_b32 v11, 1, v11",
      "v_cmp_ne_u32 vcc, 0, v11", "s_nop 3", "s_cmp_eq_u64 vcc, -1", "s_cbranch_scc1 K3_GO", "s_sleep 1", "s_branch K3_SPIN", "K3_GO:")
    for j in range(8): a(f"v_mov_b32 v{128+j}, 0")
    for i in range(7):
        a(f"v_and_b32 v{4+i}, s35, v{4+i}"); fm(88+4*i, 128, f"v{4+i}")
    a("v_lshlrev_b32 v31, 5, v0", "ds_write_b128 v31, v[128:131]", "ds_write_b128 v31, v[132:135] offset:16", "s_waitcnt lgkmcnt(0)", "s_barrier",
      "v_cmp_gt_u32 vcc, 64, v0", "s_and_saveexec_b64 s[26:27], vcc", "s_cbranch_execz K2_END", "v_lshlrev_b32 v31, 2, v0")
    for i in range(32): a(f"ds_read_b32 v{32+i}, v31 offset:{256*i}")
    a("s_waitcnt lgkmcnt(0)")
    for i in range(1, 32): a(f"v_add_f32 v32, v32, v{32+i}")
    for sw in ("v_permlane32_swap_b32", "v_permlane16_swap_b32"):
        a("v_mov_b32 v33, v32", "s_nop 1", f"{sw} v32, v33", "s_nop 1", "v_add_f32 v32, v32, v33")
    a("s_nop 1", "v_add_f32_dpp v32, v32, v32 row_ror:8 row_mask:0xf bank_mask:0xf", "v_cmp_gt_u32 vcc, 8, v0", "s_and_b64 exec, exec, vcc")
    rbf(a, "v32"); a("v_mul_f32 v32, v32, v16"); rbf(a, "v32"); a("v_lshlrev_b32 v117, 16, v117", "v_lshlrev_b32 v118, 16, v118", "v_add_f32 v32, v32, v117"); rbf(a, "v32")
    a("v_mul_f32 v32, v32, v116"); rbf(a, "v32")
    a("v_add_f32 v32, v32, v118", "v_cvt_pk_bf16_f32 v32, v32, v32", "buffer_store_short v32, v24, s[16:19], s32 offen sc0 sc1", "K2_END:", "s_endpgm")
```

```python
import sys
from common import *
import small, k1b as k1
a = Asm()
hdr = open("cdna_kernels/%s.s.ref" % NAME).read().split("; Override")[0]
K1 = NAME + "_kernel"
hdr += f"""; @launch kernel={K1} grid=(256,1,1) block=(256,1,1) lds=163840
; @launch kernel=k2_kernel grid=({312 if small.DED else 256},1,1) block=(256,1,1) lds=24576
.amdgcn_target "amdgcn-amd-amdhsa--gfx950"
.text
"""
k1.k1(a); small.k2(a)
out = hdr + "\n".join(a.L) + '\n.section .rodata,"a"\n' + desc(K1, 512, 256) + desc("k2_kernel", 208, 208)
open(sys.argv[1] if len(sys.argv) > 1 else "cdna_kernels/%s.s" % NAME, "w").write(out)
```

```python
from common import *
from small import f2u, silu_bf, unpack8, CS
import os
DBG = os.environ.get("DBG")
KB0, KB1, VB0, VB1, XR = 0, 32768, 65536, 98304, 131072
LA = 7
SNAKE = int(os.environ.get('SNAKE', '3'))
PF = int(os.environ.get('PF', '3'))
NW0 = int(os.environ.get('NW0', '4'))
FB = float(os.environ.get('FB', '96'))
WG_ = 4
S_, P_, NM, Q_ = 32, 96, 112, 128
KRD, VRD = 240, 244
KD, VD = 8, 120
RING = 192
MF = "v_mfma_f32_16x16x32_bf16"
PST = os.environ.get("PST")
def pst(a, i):
    if PST: a(f"s_memrealtime s[{60+2*i}:{61+2*i}]", "s_waitcnt lgkmcnt(0)")
def stamp(a, i):
    if PST and 1 <= i <= 6: return
    if DBG: a(f"s_memrealtime s[{60+2*i}:{61+2*i}]", "s_waitcnt lgkmcnt(0)")
def cost(x):
    if isinstance(x, tuple): return 1
    return 2 if x.startswith("v_exp") else 4 if x.endswith(" lds") else 1
class Stream:
    def __init__(s, a): s.a = a; s.q = []; s.n = 0; s.done = -1
    def rd(s, it, idx, k):
        slot = RING + 4 * (idx % 16)
        kind, addr, off = it[0][k]
        if kind == 'b128': s.a(f"ds_read_b128 a[{slot}:{slot+3}], v{addr} offset:{off}")
        else: s.a(f"ds_read_b64_tr_b16 a[{slot+2*k}:{slot+2*k+1}], v{addr} offset:{off}")
        s.q.append(idx)
    def run(s, items, fill, nxt):
        allit = items + nxt
        for i, it in enumerate(items):
            idx = s.n + i
            for h in range(2):
                if i + LA < len(allit) and h < len(allit[i + LA][0]): s.rd(allit[i + LA], idx + LA, h)
                for f in fill.get(2 * i + h, []):
                    if isinstance(f, tuple): s.a(f[0]); s.q.append(idx + f[1])
                    else: s.a(f)
                if h == 0 and s.done < idx:
                    need = idx + min(WG_ - 1, len(items) - 1 - i)
                    pos = max([k for k, x in enumerate(s.q) if x <= need], default=-1)
                    s.a(f"s_waitcnt lgkmcnt({min(len(s.q) - pos - 1, 15)})")
                    s.q = s.q[pos + 1:]; s.done = need
                slot = RING + 4 * (idx % 16)
                s.a(it[1][h ^ (idx & SNAKE & 1)].format(A=f"a[{slot}:{slot+3}]"))
        s.n += len(items)
    def prime(s, items):
        for k in range(LA):
            for h in range(len(items[k][0])): s.rd(items[k], s.n + k, h)
    def state(s): return ([x - s.n for x in s.q], s.done - s.n, s.n % 16)
def r4(b, p="v"): return f"{p}[{b}:{b+3}]"
def qk_items(t):
    buf, sb = (t & 1) * 32768, S_ + 32 * (t & 1)
    it = []
    for kb, s in ([(kb, s) for s in range(8) for kb in range(4)] if SNAKE & 2 else [(kb, s) for kb in range(4) for s in range(8)]):
        if True:
            m = []
            for rh in range(2):
                d = sb + kb * 8 + rh * 4
                m.append(f"{MF} {r4(d)}, {{A}}, {r4(Q_ + (s*2+rh)*4)}, {r4(NM+4*rh) if s == 0 else r4(d)}")
            it.append(([('b128', KRD + (s & 3), buf + kb * 8192 + (s >> 2) * 256)], m))
    return it
def pv_items(t):
    buf = (t & 1) * 32768
    it = []
    for q in range(2):
        for dt in range(16):
            rd = [('tr', VRD + (dt & 7), buf + (q * 32 + tt * 16) * 512 + (dt >> 3) * 256) for tt in range(2)]
            it.append((rd, [f"{MF} {r4((dt*2+rh)*4,'a')}, {{A}}, {r4(P_+(q*2+rh)*4)}, {r4((dt*2+rh)*4,'a')}" for rh in range(2)]))
    return it
def dma(t, isv):
    b = (VB0 if isv else 0) + (t & 1) * 32768
    s0, s1, srd = ("s34", "s36", "s[12:15]") if isv else ("s33", "s35", "s[8:11]")
    o = []
    for q in range(2):
        o.append(f"s_add_u32 m0, s44, {b + q*4096}")
        o.append(f"s_add_u32 {s1}, {s0}, 4096" if q == 0 else f"s_add_u32 {s0}, {s0}, 32768")
        for i in range(4): o.append(f"buffer_load_dwordx4 v{VD+i if isv else KD+4*q+i}, {srd}, {s1 if q else s0} offen offset:{i*1024} lds")
    return o
ONES, L_ = 252, (124, 16)
def softmax(t, kbs):
    sb = S_ + 32 * (t & 1); o = []; prev = None
    for kb in kbs:
        for rh in range(2):
            for p in range(2):
                r = sb + kb * 8 + rh * 4 + 2 * p
                o += [f"v_exp_f32 v{r}, v{r}"] + (prev or []) + [f"v_exp_f32 v{r+1}, v{r+1}"]
                prev = [f"v_cvt_pk_bf16_f32 v{P_+((kb>>1)*2+rh)*4+(kb&1)*2+p}, v{r}, v{r+1}"]
    return o, prev
def lsum(q): return [f"{MF} {r4(L_[rh])}, {r4(ONES)}, {r4(P_+(q*2+rh)*4)}, {r4(L_[rh])}" for rh in range(2)]
def spread(fill, lst, g0, g1):
    tot = sum(cost(x) for x in lst); n = g1 - g0; acc = 0
    for x in lst:
        g = g0 + min(n - 1, int(acc * n / tot)); fill.setdefault(g, []).append(x); acc += cost(x)
def maxchk(t):
    sb = S_ + 32 * (t & 1); o = []
    for rh in range(2):
        rs = [sb + kb * 8 + rh * 4 + e for kb in range(4) for e in range(4)]
        c = [f"v_max3_f32 v{22+rh}, v{rs[0]}, v{rs[1]}, v{rs[2]}"]
        for i in range(3, 15, 2): c.append(f"v_max3_f32 v{22+rh}, v{22+rh}, v{rs[i]}, v{rs[i+1]}")
        c.append(f"v_max_f32 v{22+rh}, v{22+rh}, v{rs[15]}")
        o.append(c)
    return [x for p in zip(*o) for x in p] + ["v_max_f32 v24, v22, v23"]
def xred(a, v, t, op):
    a(f"v_mov_b32 v{t}, v{v}", "s_nop 1", f"v_permlane32_swap_b32 v{v}, v{t}", "s_nop 1", f"{op} v{v}, v{v}, v{t}",
      f"v_mov_b32 v{t}, v{v}", "s_nop 1", f"v_permlane16_swap_b32 v{v}, v{t}", "s_nop 1", f"{op} v{v}, v{v}, v{t}")
def slow(a, t, first):
    sb = S_ + 32 * (t & 1)
    a("s_nop 15")
    for rh in range(2):
        xred(a, 22 + rh, 24, "v_max_f32")
        a(f"v_add_f32 v{22+rh}, 0x{f2u(FB):x}, v{22+rh}")
        if not first: a(f"v_max_f32 v{22+rh}, 0, v{22+rh}", f"v_sub_f32 v{20+rh}, 0, v{22+rh}", f"v_exp_f32 v{20+rh}, v{20+rh}", "s_nop 0")
    for i in range(32): a(f"v_sub_f32 v{sb+i}, v{sb+i}, v{22+((i>>2)&1)}")
    for i in range(8): a(f"v_sub_f32 v{NM+i}, v{NM+i}, v{22+(i>>2)}")
    if not first:
        for i in range(8): a(f"v_mul_f32 v{L_[i>>2]+(i&3)}, v{L_[i>>2]+(i&3)}, v{20+(i>>2)}")
        for i in range(0, 128, 4):
            for k in range(4): a(f"v_accvgpr_read_b32 v{24+k}, a{i+k}")
            for k in range(4): a(f"v_mul_f32 v{24+k}, v{24+k}, v{20+((i>>2)&1)}")
            for k in range(4): a(f"v_accvgpr_write_b32 a{i+k}, v{24+k}")
    a("s_nop 3")
def place_dma(fill, used, lst, g0, sp):
    k = 0; pend = []
    for x in lst:
        if x.endswith(" lds"):
            g = g0 + sp * k; k += 1
            fill.setdefault(g - 1, []).extend(pend); used[g - 1] += len(pend); pend = []
            fill.setdefault(g, []).append(x); used[g] += 4
        else: pend.append(x)
def iteration(a, st, j, w, last=0, wo_dma=None):
    o01, t01 = softmax(j, (0, 1)); o23, t23 = softmax(j, (2, 3))
    qa = qk_items(j + 1); pb = pv_items(j); nx = qk_items(j + 2)[:LA] if last == 0 else []
    fill = {}; used = [0] * 128
    seq = (qa + pb + nx)
    for i in range(64):
        for h in range(2):
            if i + LA < len(seq) and h < len(seq[i + LA][0]): used[2 * i + h] += 1
        if i % WG_ == 0: used[2 * i] += 1
    off = (0, 2, 3, 5)[w]
    if last < 2:
        fill[11] = ["s_waitcnt vmcnt(8)", "s_barrier"]; used[11] += 2
        place_dma(fill, used, dma(j + 1, 1), 14 + off, 6)
    if last == 0:
        fill[64 + 9] = ["s_waitcnt vmcnt(8)", "s_barrier"]; used[64 + 9] += 2
        place_dma(fill, used, dma(j + 3, 0), 64 + 12 + off, 6)
    for q in range(2):
        for rh in range(2):
            g = 64 + 32 * q + 3 + 2 * rh; fill.setdefault(g, []).append(lsum(q)[rh]); used[g] += 2
    queue = [(x, 0, 61) for x in o01] + [(o23[0], 0, 61)] + [(x, 0, 61) for x in t01] + [(x, 0, 94) for x in o23[1:]] + [("s_nop 0", 0, 94)] + [(x, 0, 94) for x in t23]
    if last < 2: queue += [(x, 70, 126) for x in maxchk(j + 1) + ["v_cmp_lt_f32 vcc, s41, v24"]]
    g = 0 if last < 2 else 64
    if last == 2:
        pre = [x for x, _, d in queue if d == 61]; queue = queue[len(pre):]
        a(*pre[:20]); a("s_waitcnt vmcnt(0)", "s_barrier"); a(*wo_dma); a(*pre[20:]); st.prime(pb)
    ne = nm = 0
    for x, lo, dl in queue:
        g = max(g, lo)
        if x.startswith("v_exp"):
            if last < 2: g = max(g, int(ne * 2.75))
            ne += 1
        elif lo: g = max(g, lo + int(nm * 2.7)); nm += 1
        g = min(range(g, g + 3), key=lambda k: (max(used[k] + cost(x), 2), k))
        assert g <= dl, (x, g, dl)
        fill.setdefault(g, []).append(x); used[g] += cost(x)
    if os.environ.get('SHOW'): print(j, w, used, sum(max(16, 8 + 4 * u) for u in used))
    if last < 2: st.run(qa, {k: v for k, v in fill.items() if k < 64}, pb[:LA])
    st.run(pb, {k - 64: v for k, v in fill.items() if k >= 64}, nx)
    if last < 2: a(f"s_cbranch_vccnz SLOW_{j}_{w}", f"BACK_{j}_{w}:")

def k1(a):
    a.begin(NAME + "_kernel")
    a("s_cmp_ge_u32 s2, 256", "s_cbranch_scc1 K1_END")
    a.srd(4, 0, XB); a.srd(8, 8, 8388608); a.srd(12, 16, 8388608); a.srd(16, 24, 448*8192); a.srd(20, 32, 4096*896); a.srd(24, 112, WS_END); a.srd(48, 88, 448*2688*2); a.srd(52, 80, 896); a.srd(56, 104, 256)
    a("v_lshrrev_b32 v1, 6, v0", "v_and_b32 v2, 63, v0", "s_nop 0", "v_readfirstlane_b32 s30, v1", "s_and_b32 s28, s2, 7", "s_lshr_b32 s29, s2, 3",
      "v_lshrrev_b32 v3, 4, v2", "v_and_b32 v4, 15, v2", "s_nop 2", "s_and_b32 s31, s30, 1", "s_lshr_b32 s32, s30, 1", "s_lshl_b32 s44, s30, 13",
      "s_lshl_b32 s33, s28, 20", "s_mov_b32 s34, s33", f"s_mov_b32 s41, 0x{f2u(32.0 - FB):x}")
    stamp(a, 0)
    a.srd_fin()
    WR = [XR, VB1, KB1, VB0]
    def wqdma(c):
        o = []
        for q in range(2):
            o.append(f"s_add_u32 m0, s44, {WR[c % 4] + q*4096}")
            o.append("s_add_u32 s38, s37, 32768" if q == 0 else "s_add_u32 s37, s37, 262144")
            for i in range(4): o.append(f"buffer_load_dwordx4 v{24+i}, s[16:19], {'s38' if q else 's37'} offen offset:{i*1024} lds")
        return o
    def emitX():
        a("s_lshl_b32 s3, s29, 6", "s_lshl_b32 s35, s32, 5", "s_add_u32 s3, s3, s35", "s_mul_i32 s3, s3, 896", "s_add_u32 s35, s3, 16*896", "v_mul_u32_u24 v5, 896, v4", "v_lshl_add_u32 v5, v3, 4, v5")
        for ks in range(14):
            for rh in range(2): a(f"buffer_load_dwordx4 {r4(128+(ks*2+rh)*4)}, v5, s[4:7], {'s35' if rh else 's3'} offen offset:{64*ks}")
        for c in range(NW0): a(*wqdma(c))
    a("s_lshl_b32 s35, s30, 16", "s_lshl_b32 s36, s31, 3", "v_xor_b32 v6, s36, v2")
    for i in range(4): a(f"v_xor_b32 v{24+i}, {i<<1}, v6", f"v_lshlrev_b32 v{24+i}, 4, v{24+i}", f"v_add_u32 v{24+i}, {i*7168}, v{24+i}", f"v_add_u32 v{24+i}, s35, v{24+i}")
    a("s_lshl_b32 s37, s28, 10")
    a("v_mov_b32 v6, 0", "buffer_load_dword v30, v6, s[24:27], 0 offen sc0 sc1", "buffer_load_dword v31, v6, s[56:59], 0 offen sc0 sc1")
    a("s_cmp_lg_u32 s2, 100", "s_cbranch_scc1 NOZERO", "v_lshlrev_b32 v6, 5, v0", "v_mov_b32 v32, 0", "v_mov_b32 v33, 0", "v_mov_b32 v34, 0", "v_mov_b32 v35, 0", f"s_mov_b32 s3, {WS_R}",
      "buffer_store_dwordx4 v[32:35], v6, s[24:27], s3 offen", "buffer_store_dwordx4 v[32:35], v6, s[24:27], s3 offen offset:16", "NOZERO:")
    a("s_cmp_ge_u32 s2, 42", "s_cbranch_scc1 NOPROD1", "v_and_b32 v6, 7, v0", "v_lshrrev_b32 v7, 3, v0", "s_lshl_b32 s3, s2, 7",
      "v_mul_u32_u24 v28, 14*5376, v7", "v_lshl_add_u32 v28, v6, 4, v28", "v_mul_u32_u24 v29, 28, v7")
    for i in range(14): a(f"buffer_load_ushort v{112+i}, v29, s[52:55], 0 offen offset:{2*i}")
    for i in range(14): a(f"buffer_load_dwordx4 {r4(32+4*i)}, v28, s[48:51], s3 offen", "s_add_u32 s3, s3, 5376")
    a("s_cmp_eq_u32 s30, 0", "s_cbranch_scc1 PW0", "NOPROD1:")
    emitX()
    a("s_cmp_ge_u32 s2, 42", "s_cbranch_scc1 NOPROD2", "s_waitcnt vmcnt(60)", "PW0:", "s_cmp_lg_u32 s30, 0", "s_cbranch_scc1 PW1", "s_waitcnt vmcnt(14)", "PW1:")
    for i in range(14):
        a(f"v_lshlrev_b32 v{112+i}, 16, v{112+i}"); silu_bf(a, f"v{112+i}", "v6")
    for j in range(8): a(f"v_mov_b32 v{96+j}, 0")
    a("s_cmp_lg_u32 s30, 0", "s_cbranch_scc1 PW2", "s_waitcnt vmcnt(0)", "PW2:")
    for i in range(14):
        unpack8(a, 32+4*i, 88)
        for j in range(8): a(f"v_fmac_f32 v{96+j}, v{88+j}, v{112+i}")
    a("v_lshlrev_b32 v6, 5, v0", "ds_write_b128 v6, v[96:99] offset:8192", "ds_write_b128 v6, v[100:103] offset:8208",
      "s_waitcnt lgkmcnt(0)", "s_barrier", "s_cmp_lg_u32 s30, 0", "s_cbranch_scc1 NOPROD2", "v_lshlrev_b32 v6, 2, v0")
    for i in range(32): a(f"ds_read_b32 v{32+i}, v6 offset:{8192+256*i}")
    a("s_waitcnt lgkmcnt(0)")
    for i in range(1, 32): a(f"v_add_f32 v32, v32, v{32+i}")
    rbf(a, "v32")
    a("s_mul_i32 s3, s2, 37", "s_lshr_b32 s3, s3, 8", "s_cmp_eq_u32 s3, 1", "s_cbranch_scc1 K0_ADD1", "s_cmp_eq_u32 s3, 4", "s_cbranch_scc0 K0_NOADD", "K0_ADD1:", "v_add_f32 v32, 1.0, v32")
    rbf(a, "v32")
    a("K0_NOADD:", "s_cmp_lt_u32 s3, 2", "s_cbranch_scc0 K0_NOSC", f"v_mul_f32 v32, 0x{CS:x}, v32", "K0_NOSC:",
      "s_lshl_b32 s3, s2, 8", "buffer_store_dword v32, v6, s[24:27], s3 offen sc0 sc1", "s_waitcnt vmcnt(0)", "v_mov_b32 v32, 1", "v_mov_b32 v6, 0",
      "v_cmp_eq_u32 vcc, 0, v0", "s_and_saveexec_b64 s[46:47], vcc", "buffer_store_byte v32, v6, s[56:59], s2 offen sc0 sc1", "s_mov_b64 exec, -1"); emitX(); a("NOPROD2:")
    a("v_lshrrev_b32 v28, 5, v2", "v_and_b32 v29, 31, v2", "v_lshlrev_b32 v6, 9, v28", "v_add_u32 v6, s44, v6")
    for i in range(8): a(f"v_add_u32 v7, {2*i}, v28", "v_xor_b32 v7, v7, v29", f"v_lshl_add_u32 v{KD+i}, v7, 4, v6")
    for i in range(4): a(f"v_add_u32 v7, {2*i}, v28", "v_lshlrev_b32 v7, 1, v7", "v_xor_b32 v7, v7, v29", f"v_lshl_add_u32 v{VD+i}, v7, 4, v6")
    a("v_lshlrev_b32 v7, 9, v4")
    for k in range(4): a(f"v_add_u32 v28, {4*k}, v3", "v_xor_b32 v28, v28, v4", f"v_lshl_add_u32 v{KRD+k}, v28, 4, v7")
    a("v_bfe_u32 v28, v2, 2, 2", "v_and_b32 v29, 3, v2", "v_and_b32 v30, 1, v3", "v_lshl_add_u32 v30, v30, 2, v28",
      "v_lshl_add_u32 v6, v3, 2, v28", "v_lshlrev_b32 v6, 9, v6", "v_lshl_add_u32 v6, v29, 3, v6", f"v_add_u32 v6, {VB0}, v6")
    for k in range(8): a(f"v_xor_b32 v7, {k}, v30", f"v_lshl_add_u32 v{VRD+k}, v7, 5, v6")
    a("v_lshl_add_u32 v6, v3, 3, v28", "v_lshlrev_b32 v6, 10, v6", "v_lshl_add_u32 v6, v29, 3, v6", "s_lshl_b32 s35, s31, 9", f"s_add_u32 s35, s35, {KB1}", "v_add_u32 v6, s35, v6")
    for k in range(8): a(f"v_xor_b32 v7, {k}, v30", f"v_lshl_add_u32 v{96+k}, v7, 5, v6", f"v_add_u32 v{104+k}, 65536, v{96+k}")
    a(f"s_waitcnt vmcnt({8*NW0})", "v_mov_b32 v31, 0x3f803f80")
    if PF & 1:
        a("s_cmp_eq_u32 s30, 3", "s_cbranch_scc0 PF4", "v_lshrrev_b32 v6, 3, v2", "v_and_b32 v7, 7, v2", "v_lshlrev_b32 v6, 13, v6", "v_lshl_add_u32 v6, v7, 7, v6",
          "s_mul_i32 s3, s29, 81920", "s_lshl_b32 s35, s28, 10", "s_add_u32 s3, s3, s35", "s_add_u32 s3, s3, 1048576", "buffer_load_dword v64, v6, s[16:19], s3 offen",
          "s_add_u32 s3, s3, 16384", "buffer_load_dword v65, v6, s[16:19], s3 offen", "PF4:")
    for i in range(8): a(f"v_mov_b32 v{40+i}, 0")
    for i in range(112):
        rh = (i >> 2) & 1; k = 2 * rh + (i & 1)
        a(f"v_dot2_f32_bf16 v{40+k}, v{128+i}, v31, v{40+k}", f"v_dot2_f32_bf16 v{44+k}, v{128+i}, v{128+i}, v{44+k}")
    a("s_nop 3")
    for rh in range(2):
        m, q, o = 40 + 2 * rh, 44 + 2 * rh, 88 + 4 * rh
        a(f"v_add_f32 v{m}, v{m}, v{m+1}", f"v_add_f32 v{q}, v{q}, v{q+1}")
        xred(a, m, m + 1, "v_add_f32"); xred(a, q, q + 1, "v_add_f32")
        a(f"v_mul_f32 v{m}, 0x{f2u(1/448):x}, v{m}", f"v_mul_f32 v{q}, 0x{f2u(1/448):x}, v{q}", f"v_fma_f32 v{q}, -v{m}, v{m}, v{q}", f"v_max_f32 v{q}, 0, v{q}",
          f"v_add_f32 v{q}, 0x{f2u(1e-5):x}, v{q}", f"v_rsq_f32 v{o}, v{q}", "s_nop 0", f"v_mov_b32 v{o+1}, v{o}", f"v_mul_f32 v{o+2}, v{m}, v{o}", f"v_sub_f32 v{o+2}, 0, v{o+2}", f"v_mov_b32 v{o+3}, v{o+2}")
    for i in range(112):
        rh = (i >> 2) & 1; t = 80 + 2 * (i & 3); x = 128 + i
        a(f"v_lshlrev_b32 v{t}, 16, v{x}", f"v_and_b32 v{t+1}, 0xffff0000, v{x}", f"v_pk_fma_f32 v[{t}:{t+1}], v[{t}:{t+1}], v[{88+4*rh}:{89+4*rh}], v[{90+4*rh}:{91+4*rh}]", f"v_cvt_pk_bf16_f32 v{x}, v{t}, v{t+1}")
    pst(a, 4)
    a("s_cmp_lg_u32 s30, 0", "s_cbranch_scc1 NOCW", "s_waitcnt vmcnt(0)"); pst(a, 6); a("v_lshlrev_b32 v6, 2, v2", "v_cmp_eq_u32 vcc, 3, v2", "v_mov_b32 v7, 0x01010101", "v_mov_b32 v32, 0x0101", "v_cndmask_b32 v7, v7, v32, vcc",
      "POLL:", "buffer_load_dword v32, v6, s[56:59], 0 offen sc0 sc1", "s_waitcnt vmcnt(0)", "v_and_b32 v32, v32, v7", "v_cmp_eq_u32 vcc, v32, v7", "s_nop 3", "s_and_b32 s3, vcc_lo, 15", "s_cmp_eq_u32 s3, 15",
      "s_cbranch_scc1 POLLOK", "s_sleep 1", "s_branch POLL", "POLLOK:", "v_lshlrev_b32 v6, 4, v2"); pst(a, 3)
    for i in range(4): a(f"buffer_load_dwordx4 {r4(64+4*i)}, v6, s[24:27], 0 offen offset:{1024*i} sc0 sc1")
    a("s_waitcnt vmcnt(0)")
    for i in range(4): a(f"ds_write_b128 v6, {r4(64+4*i)} offset:{1024*i}")
    a("NOCW:", "s_waitcnt lgkmcnt(0) vmcnt(0)", "s_barrier", "v_lshlrev_b32 v6, 5, v3")
    pst(a, 5)
    for c in range(NW0, 4): a(*wqdma(c))
    def crd(ks):
        b = 48
        return [f"ds_read_b128 {r4(b)}, v6 offset:{1792+128*ks}", f"ds_read_b128 {r4(b+4)}, v6 offset:{1792+128*ks+16}",
                f"ds_read_b128 {r4(b+8)}, v6 offset:{128*ks}", f"ds_read_b128 {r4(b+12)}, v6 offset:{128*ks+16}"]
    def norm(ks):
        b = 48; o = []
        for rh in range(2):
            for i in range(4):
                x = 128 + (ks * 2 + rh) * 4 + i; t = 80 + 2 * (i & 3)
                o += [f"v_lshlrev_b32 v{t}, 16, v{x}", f"v_and_b32 v{t+1}, 0xffff0000, v{x}", f"v_fma_f32 v{t}, v{t}, v{b+2*i}, v{b+8+2*i}",
                      f"v_fma_f32 v{t+1}, v{t+1}, v{b+2*i+1}, v{b+9+2*i}", f"v_cvt_pk_bf16_f32 v{x}, v{t}, v{t+1}"]
        return o
    a(*crd(0)); a("s_waitcnt lgkmcnt(0)"); a(*norm(0))
    stamp(a, 1)
    st = Stream(a)
    def wq_items(c):
        sl = c % 4; base = 104 if sl < 2 else 96; off = 32768 if sl in (0, 3) else 0
        it = []
        for t in range(16):
            rd = [('tr', base + (t & 7), off + tt * 4096 + (t >> 3) * 256) for tt in range(2)]
            it.append((rd, [f"{MF} {r4((t*2+rh)*4,'a')}, {{A}}, {r4(128+(c*2+rh)*4)}, {'0' if c == 0 else r4((t*2+rh)*4,'a')}" for rh in range(2)]))
        return it
    def dmak0():
        return ["s_sub_u32 s33, s33, 65536"] + dma(0, 0) + ["s_add_u32 s33, s33, 32768"]
    a("s_add_u32 s33, s33, 32768")
    st.prime(wq_items(0))
    for c in range(14):
        f = {}
        if c < 13:
            for k, x in enumerate(crd(c + 1)): f.setdefault(k, []).append((x, 4))
            spread(f, norm(c + 1), 9, 31)
            f.setdefault(10, []).extend([f"s_waitcnt vmcnt({16 if c == 0 else 8})", "s_barrier"])
            if 1 <= c <= 10: spread(f, wqdma(c + 3), 12, 30)
            if c == 11: spread(f, dma(1, 0), 12, 30)
            if c == 12: spread(f, dmak0() + dma(0, 1), 12, 31)
        st.run(wq_items(c), f, wq_items(c + 1)[:LA] if c < 13 else [])
    stamp(a, 2)
    a("s_nop 15")
    for s in range(8):
        for rh in range(2):
            q = Q_ + (s * 2 + rh) * 4
            for u in range(2):
                for k in range(4): a(f"v_accvgpr_read_b32 v{32+4*u+k}, a{((2*s+u)*2+rh)*4+k}")
            for k in range(4): a(f"v_cvt_pk_bf16_f32 v{q+k}, v{32+2*k}, v{33+2*k}")
        for rh in range(2):
            q = Q_ + (s * 2 + rh) * 4
            a("s_nop 0", f"v_permlane32_swap_b32 v{q}, v{q+2}", f"v_permlane32_swap_b32 v{q+1}, v{q+3}", "s_nop 1", f"v_permlane16_swap_b32 v{q}, v{q+2}", f"v_permlane16_swap_b32 v{q+1}, v{q+3}")
    for i in range(8): a(f"v_mov_b32 v{NM+i}, 0")
    for i in range(8): a(f"v_mov_b32 v{L_[i>>2]+(i&3)}, 0")
    for i in range(4): a(f"v_mov_b32 v{ONES+i}, 0x3f803f80")
    st.n = (st.n + 15) // 16 * 16; st.done = st.n - 1; st.q = []
    a("s_waitcnt vmcnt(8)", "s_barrier")
    st.prime(qk_items(0))
    fz = {}; spread(fz, [f"v_accvgpr_write_b32 a{i}, 0" for i in range(128)], 0, 64)
    st.run(qk_items(0), fz, qk_items(1)[:LA])
    a("s_barrier"); a(*dma(2, 0))
    a("s_nop 7"); a(*maxchk(0)); slow(a, 0, True)
    stamp(a, 3)
    if PF & 2:
        a("v_lshlrev_b32 v6, 7, v2", "s_cmp_eq_u32 s30, 3", "s_cbranch_scc0 PG2", "s_mul_i32 s3, s29, 14336", "s_mul_i32 s35, s28, 512*896", "s_add_u32 s3, s3, s35",
          "buffer_load_dword v30, v6, s[20:23], s3 offen", "s_add_u32 s3, s3, 8192", "buffer_load_dword v31, v6, s[20:23], s3 offen", "PG2:", "s_cmp_eq_u32 s30, 2", "s_cbranch_scc0 PG3")
        a.srd(48, 56, 448*1792*2); a.srd(52, 64, 448*1792*2); a.srd(56, 72, 448*1792*2); a.srd_fin()
        a("s_mul_i32 s3, s2, 6272", "buffer_load_dword v29, v6, s[48:51], s3 offen", "buffer_load_dword v30, v6, s[52:55], s3 offen", "buffer_load_dword v31, v6, s[56:59], s3 offen", "PG3:")
    a("s_mov_b32 s40, 15")
    NV = int(os.environ.get("NV", "1"))
    for w in range(1, NV): a(f"s_cmp_eq_u32 s30, {w}", f"s_cbranch_scc1 LOOP{w}")
    s0 = st.state()
    for w in range(NV):
        a(f"LOOP{w}:")
        iteration(a, st, 0, w); iteration(a, st, 1, w)
        assert st.state() == s0, (st.state(), s0)
        a("s_sub_u32 s40, s40, 1", "s_cmp_lg_u32 s40, 0", f"s_cbranch_scc1 LOOP{w}")
        if w < NV - 1: a("s_branch LOOP_END")
    a("LOOP_END:")
    stamp(a, 4)
    OR = [KB0, KB1, XR, VB0, VB1]
    a("s_mul_i32 s35, s30, 448")
    for i in range(7):
        a("v_add_u32 v6, s35, v2", f"v_add_u32 v6, {64*i}, v6", "v_mul_u32_u24 v7, 9363, v6", "v_lshrrev_b32 v7, 20, v7", "v_and_b32 v7, 3, v7", "v_lshlrev_b32 v7, 5, v7",
          "v_lshlrev_b32 v6, 4, v6", "v_xor_b32 v6, v6, v7", f"v_subrev_u32 v{8+i}, {(i&3)*1024}, v6")
    a("s_mul_i32 s37, s28, 512*896", "s_mul_i32 s45, s30, 7168")
    def wodma(c):
        o = []
        for q in range(2):
            o += [f"s_add_u32 m0, s45, {OR[c % 5] + q*4096}", "s_nop 0"]
            for i in range(4 if q == 0 else 3): o.append(f"buffer_load_dwordx4 v{8+4*q+i}, s[20:23], s37 offen offset:{i*1024} lds")
        return o + ["s_add_u32 s37, s37, 28672"]
    iteration(a, st, 30, 0, 1)
    iteration(a, st, 31, 0, 2, wodma(0) + wodma(1) + wodma(2))
    stamp(a, 5)
    for rh in range(2):
        a("s_nop 7", f"v_rcp_f32 v{20+rh}, v{L_[rh]}")
    a("s_lshl_b32 s35, s30, 14", f"s_add_u32 s35, s35, {VB0}", "v_lshlrev_b32 v6, 4, v2", "v_add_u32 v7, s35, v6",
      "s_lshl_b32 s35, s32, 15", f"s_add_u32 s35, s35, {VB0}", "v_add_u32 v6, s35, v6", "s_nop 7", "s_barrier")
    for s in range(8):
        for rh in range(2):
            b = 32 + 12 * rh
            for u in range(2):
                for k in range(4): a(f"v_accvgpr_read_b32 v{b+4*u+k}, a{((2*s+u)*2+rh)*4+k}")
            for k in range(8): a(f"v_mul_f32 v{b+k}, v{b+k}, v{20+rh}")
            for k in range(4): a(f"v_cvt_pk_bf16_f32 v{b+8+k}, v{b+2*k}, v{b+2*k+1}")
            a(f"ds_write_b128 v7, {r4(b+8)} offset:{1024*(s*2+rh)}")
    a("v_bfe_u32 v28, v2, 2, 2", "v_and_b32 v29, 3, v2", "v_and_b32 v30, 1, v3", "v_lshl_add_u32 v30, v30, 2, v28", "v_lshrrev_b32 v30, 1, v30",
      "v_lshl_add_u32 v24, v3, 2, v28", "v_mul_u32_u24 v24, 896, v24", "v_lshl_add_u32 v24, v29, 3, v24", "s_mul_i32 s35, s31, 14")
    for k in range(4):
        a(f"s_add_u32 s36, s35, {k}", "s_and_b32 s38, s36, 3", "s_lshr_b32 s36, s36, 2", "s_lshl_b32 s36, s36, 7", "v_xor_b32 v25, s38, v30", "v_lshl_add_u32 v25, v25, 5, v24",
          f"v_add_u32 v{240+k}, s36, v25", f"v_add_u32 v{244+k}, {VB0}, v{240+k}", f"v_add_u32 v{248+k}, {XR}, v{240+k}")
    a("s_waitcnt lgkmcnt(0) vmcnt(14)", "s_barrier")
    for ks in range(32): a(f"ds_read_b128 {r4(4*ks,'a')}, v6 offset:{1024*ks}")
    a("s_waitcnt lgkmcnt(0)")
    def wo_items(c):
        base, off = {0: (240, 0), 1: (240, 32768), 2: (248, 0), 3: (244, 0), 4: (244, 32768)}[c % 5]
        it = []
        for nt in range(14):
            rd = [('tr', base + (nt & 3), off + tt * 16 * 896 + (nt >> 2) * 128) for tt in range(2)]
            it.append((rd, [f"{MF} {r4(32+(nt*2+rh)*4)}, {{A}}, {r4((c*2+rh)*4,'a')}, {'0' if c == 0 else r4(32+(nt*2+rh)*4)}" for rh in range(2)]))
        return it
    stamp(a, 6)
    st.done = st.n - 1; st.q = []
    st.prime(wo_items(0))
    for c in range(16):
        f = {}
        if c < 15:
            f[8] = [f"s_waitcnt vmcnt({ {0: 7, 13: 7, 14: 0}.get(c, 14) })", "s_barrier"]
            if c == 0: spread(f, wodma(3) + wodma(4), 10, 27)
            if 1 <= c <= 11: spread(f, wodma(c + 4), 10, 26)
        st.run(wo_items(c), f, wo_items(c + 1)[:LA] if c < 15 else [])
    stamp(a, 7)
    a("s_lshl_b32 s35, s29, 1", "s_add_u32 s35, s35, s32", "s_mul_i32 s35, s35, 28672", f"s_mul_i32 s36, s28, {XB}", "s_add_u32 s35, s35, s36", "s_mul_i32 s36, s31, 14336",
      "s_add_u32 s35, s35, s36", f"s_add_u32 s35, s35, {WS_SLAB}", "v_lshlrev_b32 v6, 4, v2", "s_nop 15")
    for nt in range(14):
        d = 32 + 8 * nt; o = 160 + 4 * nt
        for k in range(4): a(f"v_cvt_pk_bf16_f32 v{o+k}, v{d+2*k}, v{d+2*k+1}")
        a("s_nop 1", f"v_permlane16_swap_b32 v{o}, v{o+2}", f"v_permlane16_swap_b32 v{o+1}, v{o+3}", f"buffer_store_dwordx4 {r4(o)}, v6, s[24:27], s35 offen offset:{1024*(nt&3)}")
        if nt & 3 == 3: a("s_add_u32 s35, s35, 4096")
    if DBG:
        a("s_waitcnt vmcnt(0)"); stamp(a, 8)
        a("v_mov_b32 v2, s60", "v_mov_b32 v3, s76", "v_mov_b32 v4, s62", "v_mov_b32 v5, s68", "s_lshl_b32 s3, s2, 6", "s_lshl_b32 s35, s30, 4", "s_add_u32 s3, s3, s35", "s_add_u32 s3, s3, 0x8000", "v_mov_b32 v1, 0",
          "buffer_store_dwordx4 v[2:5], v1, s[24:27], s3 offen")
        a("s_load_dwordx2 s[52:53], s[0:1], 104", "s_waitcnt lgkmcnt(0)", "s_mov_b32 s54, 256", "s_mov_b32 s55, 0x20000", f"s_cmp_lg_u32 s2, {DBG}", "s_cbranch_scc1 K1_END", "s_cmp_lg_u32 s30, 0", "s_cbranch_scc1 K1_END", "v_mov_b32 v1, 0")
        for i in range(1, 9): a(f"s_sub_u32 s56, s{60+2*i}, s60", "v_mov_b32 v2, s56", f"buffer_store_dword v2, v1, s[52:55], 0 offen offset:{64+4*i}")
    a("K1_END:", "s_endpgm")
    for j, w in [(j, w) for j in (0, 1) for w in range(NV)] + [(30, 0)]:
        a(f"SLOW_{j}_{w}:"); slow(a, j + 1, False); a(f"s_branch BACK_{j}_{w}")
```

```python
from common import *
import struct
def f2u(f): return struct.unpack("<I", struct.pack("<f", f))[0]
CS = f2u(1.4426950408889634 / 16.0)
LOG2E = f2u(1.4426950408889634)
def silu_bf(a, v, t):
    a(f"v_mul_f32 {t}, 0x{f2u(-1.4426950408889634):x}, {v}", f"v_exp_f32 {t}, {t}", "s_nop 0", f"v_add_f32 {t}, 1.0, {t}",
      f"v_rcp_f32 {t}, {t}", "s_nop 0", f"v_mul_f32 {v}, {v}, {t}")
    rbf(a, v)
def unpack8(a, src, dst):
    for i in range(4):
        a(f"v_lshlrev_b32 v{dst+2*i}, 16, v{src+i}", f"v_and_b32 v{dst+2*i+1}, 0xffff0000, v{src+i}")

def k0(a):
    a.begin("k0_kernel")
    a("s_cmp_ge_u32 s2, 42", "s_cbranch_scc1 K0_END")
    a.srd(4, 88, 448*2688*2); a.srd(8, 80, 896); a.srd(12, 112, WS_END); a.srd_fin()
    a("v_and_b32 v1, 7, v0", "v_lshrrev_b32 v2, 3, v0", "s_lshl_b32 s3, s2, 7",
      "v_mul_u32_u24 v3, 14*5376, v2", "v_lshl_add_u32 v3, v1, 4, v3", "v_mul_u32_u24 v4, 28, v2")
    a("s_mov_b32 s16, s3")
    for i in range(14):
        a(f"buffer_load_dwordx4 v[{32+4*i}:{35+4*i}], v3, s[4:7], s16 offen", "s_add_u32 s16, s16, 5376")
    for i in range(14):
        a(f"buffer_load_ushort v{8+i}, v4, s[8:11], 0 offen offset:{2*i}")
    a("s_waitcnt vmcnt(0)")
    for i in range(14):
        a(f"v_lshlrev_b32 v{8+i}, 16, v{8+i}"); silu_bf(a, f"v{8+i}", "v5")
    for j in range(8): a(f"v_mov_b32 v{96+j}, 0")
    for i in range(14):
        unpack8(a, 32+4*i, 88)
        for j in range(8): a(f"v_fmac_f32 v{96+j}, v{88+j}, v{8+i}")
    a("v_lshlrev_b32 v5, 5, v0", "ds_write_b128 v5, v[96:99]", "ds_write_b128 v5, v[100:103] offset:16",
      "s_waitcnt lgkmcnt(0)", "s_barrier", "v_cmp_gt_u32 vcc, 64, v0", "s_and_saveexec_b64 s[20:21], vcc", "s_cbranch_execz K0_END",
      "v_lshlrev_b32 v5, 2, v0")
    for i in range(32): a(f"ds_read_b32 v{32+i}, v5 offset:{256*i}")
    a("s_waitcnt lgkmcnt(0)")
    for i in range(1, 32): a(f"v_add_f32 v32, v32, v{32+i}")
    rbf(a, "v32")
    a("s_mul_i32 s16, s2, 37", "s_lshr_b32 s16, s16, 8",
      "s_cmp_eq_u32 s16, 1", "s_cbranch_scc1 K0_ADD1", "s_cmp_eq_u32 s16, 4", "s_cbranch_scc0 K0_NOADD", "K0_ADD1:",
      "v_add_f32 v32, 1.0, v32")
    rbf(a, "v32")
    a("K0_NOADD:", "s_cmp_lt_u32 s16, 2", "s_cbranch_scc0 K0_NOSC", f"v_mul_f32 v32, 0x{CS:x}, v32", "K0_NOSC:",
      "s_lshl_b32 s3, s2, 8", f"buffer_store_dword v32, v5, s[12:15], s3 offen", "K0_END:", "s_endpgm")

def wred(a, v, t):
    a("s_nop 1", f"v_add_f32_dpp v{v}, v{v}, v{v} row_ror:8 row_mask:0xf bank_mask:0xf")
    for sw in ("v_permlane16_swap_b32", "v_permlane32_swap_b32"):
        a(f"v_mov_b32 v{t}, v{v}", "s_nop 1", f"{sw} v{v}, v{t}", "s_nop 1", f"v_add_f32 v{v}, v{v}, v{t}")
import os
def ts(a, i):
    if os.environ.get("TS"): a(f"s_memrealtime s[{60+2*i}:{61+2*i}]", "s_waitcnt lgkmcnt(0)")
WL = os.environ.get("WL", "mid")
def wl(a):
    a("s_cmp_ge_u32 s2, 56", "s_cbranch_scc1 K2_NOWL", "s_lshl_b32 s24, s2, 6", "s_lshl_b32 s25, s2, 4")
    for i in range(7):
        a(f"buffer_load_dwordx4 a[{4*i}:{3+4*i}], v22, s[40:43], s24 offen", f"buffer_load_dwordx4 a[{28+4*i}:{31+4*i}], v22, s[44:47], s24 offen",
          f"buffer_load_dwordx4 a[{56+4*i}:{59+4*i}], v25, s[48:51], s25 offen", "s_add_u32 s24, s24, 3584", "s_add_u32 s25, s25, 896")
    a("K2_NOWL:")
def k2(a):
    a.begin("k2_kernel")
    a("s_cmp_ge_u32 s2, 256", "s_cbranch_scc1 K2_END"); ts(a, 0)
    a.srd(4, 0, XB); a.srd(8, 48, 896); a.srd(12, 112, WS_END); a.srd(16, 96, XB); a.srd(36, 104, 256); a.srd(40, 56, 448*1792*2); a.srd(44, 64, 448*1792*2); a.srd(48, 72, 448*1792*2); a.srd_fin()
    a("v_and_b32 v1, 7, v0", "v_lshrrev_b32 v2, 3, v0",
      "s_lshr_b32 s20, s2, 2", "s_mul_i32 s20, s20, 28672", "s_and_b32 s21, s2, 3", "s_lshl_b32 s21, s21, 7",
      "s_add_u32 s20, s20, s21", f"s_add_u32 s20, s20, {WS_SLAB}",
      "v_lshlrev_b32 v3, 9, v2", "v_lshl_add_u32 v3, v1, 4, v3",
      "v_add_u32 v4, 16384, v3",
      "v_cmp_gt_u32 vcc, 24, v2", "v_mov_b32 v9, 0x7ff00000", "s_nop 1", "v_cndmask_b32 v4, v9, v4, vcc",
      "s_lshl_b32 s22, s2, 3", "v_add_u32 v5, s22, v1",
      "v_mul_u32_u24 v6, 896, v5", "v_lshl_add_u32 v6, v2, 4, v6", "v_add_u32 v7, 512, v6", "v_cndmask_b32 v7, v9, v7, vcc",
      "v_lshlrev_b32 v8, 5, v2", "v_add_u32 v10, 1024, v8", "v_cndmask_b32 v10, v9, v10, vcc",
      "v_lshlrev_b32 v11, 4, v2", "v_add_u32 v12, 512, v11", "v_cndmask_b32 v12, v9, v12, vcc")
    for g in range(8):
        a(f"buffer_load_dwordx4 v[{32+8*g}:{35+8*g}], v3, s[12:15], s20 offen", f"buffer_load_dwordx4 v[{36+8*g}:{39+8*g}], v4, s[12:15], s20 offen",
          f"s_add_u32 s20, s20, {XB}")
    a("buffer_load_dwordx4 v[96:99], v6, s[4:7], 0 offen", "buffer_load_dwordx4 v[100:103], v7, s[4:7], 0 offen",
      "buffer_load_dwordx4 v[104:107], v11, s[8:11], 0 offen", "buffer_load_dwordx4 v[108:111], v12, s[8:11], 0 offen")
    for n, sec in enumerate((2, 4, 3, 5)):
        b = 112 + 16*n
        a(f"s_mov_b32 s21, {sec*1792}")
        for c, vo in ((0, "v8"), (1, "v10")):
            a(f"buffer_load_dwordx4 v[{b+8*c}:{b+8*c+3}], {vo}, s[12:15], s21 offen", f"buffer_load_dwordx4 v[{b+8*c+4}:{b+8*c+7}], {vo}, s[12:15], s21 offen offset:16")
    a("v_and_b32 v20, 3, v0", "v_lshrrev_b32 v21, 2, v0", "v_mul_u32_u24 v22, 7*3584, v21", "v_lshl_add_u32 v22, v20, 4, v22", "v_mul_u32_u24 v25, 7*896, v0")
    GA, A2, B2, GB = 112, 128, 144, 160
    ACC, T = 176, 192
    a("s_waitcnt vmcnt(20)"); ts(a, 1)
    for g in range(8):
        for c in range(2):
            if g == 0: unpack8(a, 32+4*c, ACC+8*c)
            else:
                unpack8(a, 32+8*g+4*c, T)
                for j in range(8): a(f"v_add_f32 v{ACC+8*c+j}, v{ACC+8*c+j}, v{T+j}")
    a("s_waitcnt vmcnt(0)")
    if WL == "mid": wl(a)
    unpack8(a, 96, T); unpack8(a, 100, T+8)
    a("v_mov_b32 v14, 0", "v_mov_b32 v15, 0")
    for j in range(16):
        v = f"v{ACC+j}"
        rbf(a, v); a(f"v_mul_f32 {v}, {v}, v{GA+j}"); rbf(a, v); a(f"v_add_f32 {v}, {v}, v{T+j}"); rbf(a, v)
        a(f"v_add_f32 v14, v14, {v}", f"v_fmac_f32 v15, {v}, {v}")
    wred(a, 14, 17); wred(a, 15, 17)
    a("v_lshrrev_b32 v13, 6, v0", "v_lshlrev_b32 v13, 6, v13", "v_lshlrev_b32 v16, 3, v1", "v_add_u32 v13, v13, v16", "ds_write_b64 v13, v[14:15]", "s_waitcnt lgkmcnt(0)", "s_barrier")
    for i in range(4): a(f"ds_read_b64 v[{32+2*i}:{33+2*i}], v16 offset:{64*i}")
    a("s_waitcnt lgkmcnt(0)")
    for i in range(1, 4): a(f"v_add_f32 v32, v32, v{32+2*i}", f"v_add_f32 v33, v33, v{33+2*i}")
    a(f"v_mul_f32 v32, 0x{f2u(1/448):x}, v32", f"v_mul_f32 v33, 0x{f2u(1/448):x}, v33", "v_fma_f32 v33, -v32, v32, v33", "v_max_f32 v33, 0, v33",
      f"v_add_f32 v33, 0x{f2u(1e-5):x}, v33", "v_rsq_f32 v33, v33", "s_nop 0", "v_mul_f32 v32, v32, v33")
    unpack8(a, 104, 40); unpack8(a, 108, 48)
    a("v_mov_b32 v14, 0")
    H = 56
    for j in range(16):
        h = f"v{H+j}"
        a(f"v_fma_f32 {h}, v{ACC+j}, v33, -v32", f"v_fma_f32 {h}, {h}, v{A2+j}, v{B2+j}"); rbf(a, h)
        a(f"v_fmac_f32 v14, {h}, v{40+j}", f"v_mul_f32 v{T+j}, {h}, v{GB+j}"); rbf(a, f"v{T+j}")
        a(f"v_add_f32 v{T+j}, v{T+j}, v{ACC+j}")
    wred(a, 14, 17)
    a("ds_write_b32 v13, v14 offset:4096")
    for j in range(8):
        a(f"v_cvt_pk_bf16_f32 v{72+j}, v{T+2*j}, v{T+2*j+1}", f"v_cvt_pk_bf16_f32 v{80+j}, v{H+2*j}, v{H+2*j+1}", f"v_cvt_pk_bf16_f32 v{88+j}, v{ACC+2*j}, v{ACC+2*j+1}")
    a(f"s_mov_b32 s20, {WS_H2}", f"s_mov_b32 s21, {WS_X1}",
      "buffer_store_dwordx4 v[72:75], v6, s[16:19], 0 offen sc0 sc1", "buffer_store_dwordx4 v[76:79], v7, s[16:19], 0 offen sc0 sc1",
      "buffer_store_dwordx4 v[80:83], v6, s[12:15], s20 offen sc0 sc1", "buffer_store_dwordx4 v[84:87], v7, s[12:15], s20 offen sc0 sc1",
      "buffer_store_dwordx4 v[88:91], v6, s[12:15], s21 offen sc0 sc1", "buffer_store_dwordx4 v[92:95], v7, s[12:15], s21 offen sc0 sc1",
      "s_waitcnt lgkmcnt(0) vmcnt(0)", "s_barrier", "v_cmp_gt_u32 vcc, 8, v0", "s_and_saveexec_b64 s[24:25], vcc", "s_cbranch_execz K2_P2",
      "s_nop 0")
    for i in range(4): a(f"ds_read_b32 v{96+i}, v16 offset:{4096+64*i}")
    a("s_waitcnt lgkmcnt(0)")
    for i in range(1, 4): a(f"v_add_f32 v96, v96, v{96+i}")
    rbf(a, "v96")
    a("v_ashrrev_i32 v97, 31, v96", "v_or_b32 v97, 0x80000000, v97", "v_xor_b32 v96, v96, v97", "v_and_b32 v96, 0xffff0000, v96",
      "v_sub_u32 v97, 0x87ff, v5", "v_or_b32 v96, v96, v97", "s_nop 1", "v_readlane_b32 s26, v96, 0")
    for i in range(1, 8): a(f"v_readlane_b32 s27, v96, {i}", "s_nop 3", "s_max_u32 s26, s26, s27")
    a("v_cmp_eq_u32 vcc, 0, v0", "s_and_b64 exec, exec, vcc", "v_mov_b32 v96, s26", "s_lshl_b32 s27, s2, 2", f"s_add_u32 s27, s27, {WS_R}", "v_mov_b32 v97, 0",
      "buffer_store_dword v96, v97, s[12:15], s27 offen sc0 sc1",
      "K2_P2:", "s_mov_b64 exec, -1", "s_cmp_ge_u32 s2, 56", "s_cbranch_scc1 K2_END")
    ts(a, 2)
    if WL == "late": wl(a)
    k3(a)

def k3(a):
    a("v_and_b32 v26, 7, v0", "v_lshlrev_b32 v23, 2, v26", "s_lshl_b32 s25, s2, 5", f"s_add_u32 s24, s25, {5*1792}", "buffer_load_dword v116, v23, s[12:15], s24 offen",
      "v_and_b32 v2, 63, v0", "v_lshlrev_b32 v2, 4, v2", f"s_mov_b32 s24, {WS_R}",
      "K2_SPIN:", "buffer_load_dwordx4 v[4:7], v2, s[12:15], s24 offen sc0 sc1", "s_waitcnt vmcnt(0)", "v_and_b32 v8, v4, v5", "v_and_b32 v9, v6, v7", "v_and_b32 v8, v8, v9", "v_and_b32 v8, 0x8000, v8",
      "v_cmp_ne_u32 vcc, 0, v8", "s_nop 3", "s_cmp_eq_u64 vcc, -1", "s_cbranch_scc1 K2_GO", "s_sleep 1", "s_branch K2_SPIN", "K2_GO:",
      "v_max3_u32 v4, v4, v5, v6", "v_max_u32 v4, v4, v7"); ts(a, 3)
    for sw in ("v_permlane32_swap_b32", "v_permlane16_swap_b32"):
        a("v_mov_b32 v5, v4", "s_nop 1", f"{sw} v4, v5", "s_nop 1", "v_max_u32 v4, v4, v5")
    for r in (8, 4, 2, 1): a("s_nop 1", f"v_max_u32_dpp v4, v4, v4 row_ror:{r} row_mask:0xf bank_mask:0xf")
    a("s_nop 1", "v_readfirstlane_b32 s30, v4", "s_nop 3", "s_and_b32 s31, s30, 0x7ff", "s_sub_u32 s31, 2047, s31", "s_mul_i32 s32, s31, 896",
      f"s_add_u32 s33, s32, {WS_H2}", "v_mul_u32_u24 v27, 14, v21")
    for i in range(7): a(f"buffer_load_ushort v{12+i}, v27, s[12:15], s33 offen offset:{2*i} sc0 sc1")
    a("s_lshl_b32 s25, s2, 4", "s_add_u32 s32, s32, s25", "s_add_u32 s33, s33, s25", f"s_add_u32 s34, s32, {WS_X1}", "v_lshlrev_b32 v24, 1, v26",
      "buffer_load_ushort v117, v24, s[12:15], s33 offen sc0 sc1", "buffer_load_ushort v118, v24, s[12:15], s34 offen sc0 sc1", "s_mov_b32 s35, 0xffff0000")
    for j in range(16): a(f"v_mov_b32 v{128+j}, 0")
    a("s_waitcnt vmcnt(2)"); ts(a, 4)
    def fm(b, acc, x):
        for i in range(4): a(f"v_accvgpr_read_b32 v121, a{b+i}", "v_lshlrev_b32 v120, 16, v121", "v_and_b32 v121, s35, v121", f"v_fmac_f32 v{acc+2*i}, v120, {x}", f"v_fmac_f32 v{acc+2*i+1}, v121, {x}")
    for i in range(7):
        a(f"v_lshlrev_b32 v{12+i}, 16, v{12+i}"); fm(4*i, 128, f"v{12+i}"); fm(28+4*i, 136, f"v{12+i}")
    a("v_lshlrev_b32 v28, 8, v21", "v_lshl_add_u32 v28, v20, 5, v28", "ds_write_b128 v28, v[128:131]", "ds_write_b128 v28, v[132:135] offset:16",
      "ds_write_b128 v28, v[136:139] offset:128", "ds_write_b128 v28, v[140:143] offset:144", "s_waitcnt lgkmcnt(0)", "s_barrier",
      "v_and_b32 v29, 63, v0", "v_lshrrev_b32 v30, 6, v0", "v_lshlrev_b32 v31, 12, v30", "v_lshl_add_u32 v31, v29, 2, v31")
    for i in range(16): a(f"ds_read_b32 v{128+i}, v31 offset:{256*i}")
    a("s_waitcnt lgkmcnt(0)")
    for i in range(1, 16): a(f"v_add_f32 v128, v128, v{128+i}")
    a("v_lshlrev_b32 v31, 2, v0", "ds_write_b32 v31, v128 offset:16384", "s_waitcnt lgkmcnt(0)", "s_barrier",
      "v_cmp_gt_u32 vcc, 32, v0", "s_and_saveexec_b64 s[26:27], vcc", "s_cbranch_execz K3_PUB")
    for i in range(4): a(f"ds_read_b32 v{128+i}, v31 offset:{16384+256*i}", f"ds_read_b32 v{132+i}, v31 offset:{16384+128+256*i}")
    a("s_waitcnt lgkmcnt(0)")
    for i in range(1, 4): a(f"v_add_f32 v128, v128, v{128+i}", f"v_add_f32 v132, v132, v{132+i}")
    rbf(a, "v128"); rbf(a, "v132"); silu_bf(a, "v128", "v129"); a("v_mul_f32 v128, v128, v132"); rbf(a, "v128")
    a("v_or_b32 v128, 1, v128", "s_lshl_b32 s25, s2, 7", f"s_add_u32 s25, s25, {WS_YP}", "buffer_store_dword v128, v31, s[12:15], s25 offen sc0 sc1",
      "K3_PUB:", "s_mov_b64 exec, -1", "v_mul_u32_u24 v2, 28, v0", f"s_mov_b32 s24, {WS_YP}",
      "s_and_b32 s36, s30, 0xffff0000", "s_cmp_lt_i32 s36, 0", "s_cbranch_scc1 K4_POS", "s_not_b32 s36, s36", "s_and_b32 s36, s36, 0xffff0000", "s_branch K4_RD",
      "K4_POS:", "s_and_b32 s36, s36, 0x7fffffff", "K4_RD:", "v_mov_b32 v16, s36",
      f"v_mul_f32 v16, 0x{f2u(-1.4426950408889634):x}, v16", "v_exp_f32 v16, v16", "s_nop 0", "v_add_f32 v16, 1.0, v16", "v_rcp_f32 v16, v16", "s_nop 0")
    rbf(a, "v16")
    ts(a, 5)
    a("K3_SPIN:", "buffer_load_dwordx4 v[4:7], v2, s[12:15], s24 offen sc0 sc1", "buffer_load_dwordx3 v[8:10], v2, s[12:15], s24 offen offset:16 sc0 sc1", "s_waitcnt vmcnt(0)",
      "v_and_b32 v11, v4, v5", "v_and_b32 v12, v6, v7", "v_and_b32 v13, v8, v9", "v_and_b32 v11, v11, v12", "v_and_b32 v13, v13, v10", "v_and_b32 v11, v11, v13", "v_and_b32 v11, 1, v11",
      "v_cmp_ne_u32 vcc, 0, v11", "s_nop 3", "s_cmp_eq_u64 vcc, -1", "s_cbranch_scc1 K3_GO", "s_sleep 1", "s_branch K3_SPIN", "K3_GO:"); ts(a, 6)
    for j in range(8): a(f"v_mov_b32 v{128+j}, 0")
    for i in range(7):
        a(f"v_and_b32 v{4+i}, s35, v{4+i}"); fm(56+4*i, 128, f"v{4+i}")
    a("v_lshlrev_b32 v31, 5, v0", "ds_write_b128 v31, v[128:131]", "ds_write_b128 v31, v[132:135] offset:16", "s_waitcnt lgkmcnt(0)", "s_barrier",
      "v_cmp_gt_u32 vcc, 64, v0", "s_and_saveexec_b64 s[26:27], vcc", "s_cbranch_execz K2_END", "v_lshlrev_b32 v31, 2, v0")
    for i in range(32): a(f"ds_read_b32 v{32+i}, v31 offset:{256*i}")
    a("s_waitcnt lgkmcnt(0)")
    for i in range(1, 32): a(f"v_add_f32 v32, v32, v{32+i}")
    for sw in ("v_permlane32_swap_b32", "v_permlane16_swap_b32"):
        a("v_mov_b32 v33, v32", "s_nop 1", f"{sw} v32, v33", "s_nop 1", "v_add_f32 v32, v32, v33")
    a("s_nop 1", "v_add_f32_dpp v32, v32, v32 row_ror:8 row_mask:0xf bank_mask:0xf", "v_cmp_gt_u32 vcc, 8, v0", "s_and_b64 exec, exec, vcc")
    rbf(a, "v32"); a("v_mul_f32 v32, v32, v16"); rbf(a, "v32"); a("v_lshlrev_b32 v117, 16, v117", "v_lshlrev_b32 v118, 16, v118", "v_add_f32 v32, v32, v117"); rbf(a, "v32")
    a("v_mul_f32 v32, v32, v116"); rbf(a, "v32")
    a("v_add_f32 v32, v32, v118", "v_cvt_pk_bf16_f32 v32, v32, v32", "buffer_store_short v32, v24, s[16:19], s32 offen sc0 sc1")
    if os.environ.get("TS"):
        a("s_waitcnt vmcnt(0)"); ts(a, 7); a("s_cmp_lg_u32 s2, 3", "s_cbranch_scc1 K2_END", "v_mov_b32 v1, 0", "s_load_dwordx2 s[36:37], s[0:1], 104", "s_waitcnt lgkmcnt(0)")
        for i in range(1, 8): a(f"s_sub_u32 s56, s{60+2*i}, s60", "v_mov_b32 v2, s56", f"buffer_store_dword v2, v1, s[36:39], 0 offen offset:{4*i}")
    a("K2_END:", "s_endpgm")
```

```python
from common import *
import struct
def f2u(f): return struct.unpack("<I", struct.pack("<f", f))[0]
CS = f2u(1.4426950408889634 / 16.0)
LOG2E = f2u(1.4426950408889634)
def silu_bf(a, v, t):
    a(f"v_mul_f32 {t}, 0x{f2u(-1.4426950408889634):x}, {v}", f"v_exp_f32 {t}, {t}", "s_nop 0", f"v_add_f32 {t}, 1.0, {t}",
      f"v_rcp_f32 {t}, {t}", "s_nop 0", f"v_mul_f32 {v}, {v}, {t}")
    rbf(a, v)
def unpack8(a, src, dst):
    for i in range(4):
        a(f"v_lshlrev_b32 v{dst+2*i}, 16, v{src+i}", f"v_and_b32 v{dst+2*i+1}, 0xffff0000, v{src+i}")

def k0(a):
    a.begin("k0_kernel")
    a("s_cmp_ge_u32 s2, 42", "s_cbranch_scc1 K0_END")
    a.srd(4, 88, 448*2688*2); a.srd(8, 80, 896); a.srd(12, 112, WS_END); a.srd_fin()
    a("v_and_b32 v1, 7, v0", "v_lshrrev_b32 v2, 3, v0", "s_lshl_b32 s3, s2, 7",
      "v_mul_u32_u24 v3, 14*5376, v2", "v_lshl_add_u32 v3, v1, 4, v3", "v_mul_u32_u24 v4, 28, v2")
    a("s_mov_b32 s16, s3")
    for i in range(14):
        a(f"buffer_load_dwordx4 v[{32+4*i}:{35+4*i}], v3, s[4:7], s16 offen", "s_add_u32 s16, s16, 5376")
    for i in range(14):
        a(f"buffer_load_ushort v{8+i}, v4, s[8:11], 0 offen offset:{2*i}")
    a("s_waitcnt vmcnt(0)")
    for i in range(14):
        a(f"v_lshlrev_b32 v{8+i}, 16, v{8+i}"); silu_bf(a, f"v{8+i}", "v5")
    for j in range(8): a(f"v_mov_b32 v{96+j}, 0")
    for i in range(14):
        unpack8(a, 32+4*i, 88)
        for j in range(8): a(f"v_fmac_f32 v{96+j}, v{88+j}, v{8+i}")
    a("v_lshlrev_b32 v5, 5, v0", "ds_write_b128 v5, v[96:99]", "ds_write_b128 v5, v[100:103] offset:16",
      "s_waitcnt lgkmcnt(0)", "s_barrier", "v_cmp_gt_u32 vcc, 64, v0", "s_and_saveexec_b64 s[20:21], vcc", "s_cbranch_execz K0_END",
      "v_lshlrev_b32 v5, 2, v0")
    for i in range(32): a(f"ds_read_b32 v{32+i}, v5 offset:{256*i}")
    a("s_waitcnt lgkmcnt(0)")
    for i in range(1, 32): a(f"v_add_f32 v32, v32, v{32+i}")
    rbf(a, "v32")
    a("s_mul_i32 s16, s2, 37", "s_lshr_b32 s16, s16, 8",
      "s_cmp_eq_u32 s16, 1", "s_cbranch_scc1 K0_ADD1", "s_cmp_eq_u32 s16, 4", "s_cbranch_scc0 K0_NOADD", "K0_ADD1:",
      "v_add_f32 v32, 1.0, v32")
    rbf(a, "v32")
    a("K0_NOADD:", "s_cmp_lt_u32 s16, 2", "s_cbranch_scc0 K0_NOSC", f"v_mul_f32 v32, 0x{CS:x}, v32", "K0_NOSC:",
      "s_lshl_b32 s3, s2, 8", f"buffer_store_dword v32, v5, s[12:15], s3 offen", "K0_END:", "s_endpgm")

def wred(a, v, t):
    a("s_nop 1", f"v_add_f32_dpp v{v}, v{v}, v{v} row_ror:8 row_mask:0xf bank_mask:0xf")
    for sw in ("v_permlane16_swap_b32", "v_permlane32_swap_b32"):
        a(f"v_mov_b32 v{t}, v{v}", "s_nop 1", f"{sw} v{v}, v{t}", "s_nop 1", f"v_add_f32 v{v}, v{v}, v{t}")
import os
def ts(a, i):
    if os.environ.get("TS"): a(f"s_memrealtime s[{60+2*i}:{61+2*i}]", "s_waitcnt lgkmcnt(0)")
DED = int(os.environ.get("DED", "0")); RM = int(os.environ.get("RM", "1"))
def wl(a):
    a("s_lshl_b32 s24, s2, 6", "s_lshl_b32 s25, s2, 4")
    for i in range(7):
        a(f"buffer_load_dwordx4 v[{32+4*i}:{35+4*i}], v22, s[40:43], s24 offen", f"buffer_load_dwordx4 v[{60+4*i}:{63+4*i}], v22, s[44:47], s24 offen",
          f"buffer_load_dwordx4 v[{88+4*i}:{91+4*i}], v25, s[48:51], s25 offen", "s_add_u32 s24, s24, 3584", "s_add_u32 s25, s25, 896")
def k2(a):
    a.begin("k2_kernel")
    a(f"s_cmp_ge_u32 s2, {312 if DED else 256}", "s_cbranch_scc1 K2_END"); ts(a, 0)
    a.srd(4, 0, XB); a.srd(8, 48, 896); a.srd(12, 112, WS_END); a.srd(16, 96, XB); a.srd(36, 104, 256); a.srd(40, 56, 448*1792*2); a.srd(44, 64, 448*1792*2); a.srd(48, 72, 448*1792*2); a.srd_fin()
    if DED: a("s_cmp_ge_u32 s2, 256", "s_cbranch_scc1 K2_MOE")
    a("v_and_b32 v1, 7, v0", "v_lshrrev_b32 v2, 3, v0",
      "s_lshr_b32 s20, s2, 2", "s_mul_i32 s20, s20, 28672", "s_and_b32 s21, s2, 3", "s_lshl_b32 s21, s21, 7",
      "s_add_u32 s20, s20, s21", f"s_add_u32 s20, s20, {WS_SLAB}",
      "v_lshlrev_b32 v3, 9, v2", "v_lshl_add_u32 v3, v1, 4, v3",
      "v_add_u32 v4, 16384, v3",
      "v_cmp_gt_u32 vcc, 24, v2", "v_mov_b32 v9, 0x7ff00000", "s_nop 1", "v_cndmask_b32 v4, v9, v4, vcc",
      "s_lshl_b32 s22, s2, 3", "v_add_u32 v5, s22, v1",
      "v_mul_u32_u24 v6, 896, v5", "v_lshl_add_u32 v6, v2, 4, v6", "v_add_u32 v7, 512, v6", "v_cndmask_b32 v7, v9, v7, vcc",
      "v_lshlrev_b32 v8, 5, v2", "v_add_u32 v10, 1024, v8", "v_cndmask_b32 v10, v9, v10, vcc",
      "v_lshlrev_b32 v11, 4, v2", "v_add_u32 v12, 512, v11", "v_cndmask_b32 v12, v9, v12, vcc")
    for g in range(8):
        a(f"buffer_load_dwordx4 v[{32+8*g}:{35+8*g}], v3, s[12:15], s20 offen", f"buffer_load_dwordx4 v[{36+8*g}:{39+8*g}], v4, s[12:15], s20 offen",
          f"s_add_u32 s20, s20, {XB}")
    a("buffer_load_dwordx4 v[96:99], v6, s[4:7], 0 offen", "buffer_load_dwordx4 v[100:103], v7, s[4:7], 0 offen",
      "buffer_load_dwordx4 v[104:107], v11, s[8:11], 0 offen", "buffer_load_dwordx4 v[108:111], v12, s[8:11], 0 offen")
    for n, sec in enumerate((2, 4, 3, 5)):
        b = 112 + 16*n
        a(f"s_mov_b32 s21, {sec*1792}")
        for c, vo in ((0, "v8"), (1, "v10")):
            a(f"buffer_load_dwordx4 v[{b+8*c}:{b+8*c+3}], {vo}, s[12:15], s21 offen", f"buffer_load_dwordx4 v[{b+8*c+4}:{b+8*c+7}], {vo}, s[12:15], s21 offen offset:16")
    GA, A2, B2, GB = 112, 128, 144, 160
    ACC, T = 176, 192
    a("s_waitcnt vmcnt(20)"); ts(a, 1)
    for g in range(8):
        for c in range(2):
            if g == 0: unpack8(a, 32+4*c, ACC+8*c)
            else:
                unpack8(a, 32+8*g+4*c, T)
                for j in range(8): a(f"v_add_f32 v{ACC+8*c+j}, v{ACC+8*c+j}, v{T+j}")
    a("s_waitcnt vmcnt(0)")
    unpack8(a, 96, T); unpack8(a, 100, T+8)
    a("v_mov_b32 v14, 0", "v_mov_b32 v15, 0")
    for j in range(16):
        v = f"v{ACC+j}"
        rbf(a, v); a(f"v_mul_f32 {v}, {v}, v{GA+j}"); rbf(a, v); a(f"v_add_f32 {v}, {v}, v{T+j}"); rbf(a, v)
        a(f"v_add_f32 v14, v14, {v}", f"v_fmac_f32 v15, {v}, {v}")
    wred(a, 14, 17); wred(a, 15, 17)
    a("v_lshrrev_b32 v13, 6, v0", "v_lshlrev_b32 v13, 6, v13", "v_lshlrev_b32 v16, 3, v1", "v_add_u32 v13, v13, v16", "ds_write_b64 v13, v[14:15]", "s_waitcnt lgkmcnt(0)", "s_barrier")
    for i in range(4): a(f"ds_read_b64 v[{32+2*i}:{33+2*i}], v16 offset:{64*i}")
    a("s_waitcnt lgkmcnt(0)")
    for i in range(1, 4): a(f"v_add_f32 v32, v32, v{32+2*i}", f"v_add_f32 v33, v33, v{33+2*i}")
    a(f"v_mul_f32 v32, 0x{f2u(1/448):x}, v32", f"v_mul_f32 v33, 0x{f2u(1/448):x}, v33", "v_fma_f32 v33, -v32, v32, v33", "v_max_f32 v33, 0, v33",
      f"v_add_f32 v33, 0x{f2u(1e-5):x}, v33", "v_rsq_f32 v33, v33", "s_nop 0", "v_mul_f32 v32, v32, v33")
    unpack8(a, 104, 40); unpack8(a, 108, 48)
    a("v_mov_b32 v14, 0")
    H = 56
    for j in range(16):
        h = f"v{H+j}"
        a(f"v_fma_f32 {h}, v{ACC+j}, v33, -v32", f"v_fma_f32 {h}, {h}, v{A2+j}, v{B2+j}"); rbf(a, h)
        a(f"v_fmac_f32 v14, {h}, v{40+j}", f"v_mul_f32 v{T+j}, {h}, v{GB+j}"); rbf(a, f"v{T+j}")
        a(f"v_add_f32 v{T+j}, v{T+j}, v{ACC+j}")
    wred(a, 14, 17)
    a("ds_write_b32 v13, v14 offset:4096")
    for j in range(8):
        a(f"v_cvt_pk_bf16_f32 v{72+j}, v{T+2*j}, v{T+2*j+1}", f"v_cvt_pk_bf16_f32 v{80+j}, v{H+2*j}, v{H+2*j+1}", f"v_cvt_pk_bf16_f32 v{88+j}, v{ACC+2*j}, v{ACC+2*j+1}")
    a(f"s_mov_b32 s20, {WS_H2}", f"s_mov_b32 s21, {WS_X1}",
      "buffer_store_dwordx4 v[72:75], v6, s[16:19], 0 offen sc0 sc1", "buffer_store_dwordx4 v[76:79], v7, s[16:19], 0 offen sc0 sc1",
      "buffer_store_dwordx4 v[80:83], v6, s[12:15], s20 offen sc0 sc1", "buffer_store_dwordx4 v[84:87], v7, s[12:15], s20 offen sc0 sc1",
      "buffer_store_dwordx4 v[88:91], v6, s[12:15], s21 offen sc0 sc1", "buffer_store_dwordx4 v[92:95], v7, s[12:15], s21 offen sc0 sc1",
      "s_waitcnt lgkmcnt(0) vmcnt(0)", "s_barrier", "v_cmp_gt_u32 vcc, 8, v0", "s_and_saveexec_b64 s[24:25], vcc", "s_cbranch_execz K2_P2",
      "s_nop 0")
    for i in range(4): a(f"ds_read_b32 v{96+i}, v16 offset:{4096+64*i}")
    a("s_waitcnt lgkmcnt(0)")
    for i in range(1, 4): a(f"v_add_f32 v96, v96, v{96+i}")
    rbf(a, "v96")
    a("v_ashrrev_i32 v97, 31, v96", "v_or_b32 v97, 0x80000000, v97", "v_xor_b32 v96, v96, v97", "v_and_b32 v96, 0xffff0000, v96",
      "v_sub_u32 v97, 0x87ff, v5", "v_or_b32 v96, v96, v97", "s_nop 1", "v_readlane_b32 s26, v96, 0")
    for i in range(1, 8): a(f"v_readlane_b32 s27, v96, {i}", "s_nop 3", "s_max_u32 s26, s26, s27")
    a("v_cmp_eq_u32 vcc, 0, v0", "s_and_b64 exec, exec, vcc", "v_mov_b32 v96, s26", "s_lshl_b32 s27, s2, 2", f"s_add_u32 s27, s27, {WS_R}", "v_mov_b32 v97, 0",
      "buffer_store_dword v96, v97, s[12:15], s27 offen sc0 sc1",
      "K2_P2:")
    if DED: a("s_endpgm", "K2_MOE:", "s_sub_u32 s2, s2, 256")
    else: a("s_mov_b64 exec, -1", "s_cmp_ge_u32 s2, 56", "s_cbranch_scc1 K2_END")
    if RM: a("s_and_b32 s24, s2, 7", "s_mul_i32 s24, s24, 7", "s_lshr_b32 s2, s2, 3", "s_add_u32 s2, s2, s24")
    a("v_and_b32 v20, 3, v0", "v_lshrrev_b32 v21, 2, v0", "v_mul_u32_u24 v22, 7*3584, v21", "v_lshl_add_u32 v22, v20, 4, v22", "v_mul_u32_u24 v25, 7*896, v0")
    ts(a, 2)
    wl(a)
    k3(a)

def k3(a):
    a("v_and_b32 v26, 7, v0", "v_lshlrev_b32 v23, 2, v26", "s_lshl_b32 s25, s2, 5", f"s_add_u32 s24, s25, {5*1792}", "buffer_load_dword v116, v23, s[12:15], s24 offen",
      "v_and_b32 v2, 63, v0", "v_lshlrev_b32 v2, 4, v2", f"s_mov_b32 s24, {WS_R}",
      "K2_SPIN:", "buffer_load_dwordx4 v[4:7], v2, s[12:15], s24 offen sc0 sc1", "s_waitcnt vmcnt(0)", "v_and_b32 v8, v4, v5", "v_and_b32 v9, v6, v7", "v_and_b32 v8, v8, v9", "v_and_b32 v8, 0x8000, v8",
      "v_cmp_ne_u32 vcc, 0, v8", "s_nop 3", "s_cmp_eq_u64 vcc, -1", "s_cbranch_scc1 K2_GO", f"s_sleep {os.environ.get('SL', '1')}", "s_branch K2_SPIN", "K2_GO:",
      "v_max3_u32 v4, v4, v5, v6", "v_max_u32 v4, v4, v7"); ts(a, 3)
    for sw in ("v_permlane32_swap_b32", "v_permlane16_swap_b32"):
        a("v_mov_b32 v5, v4", "s_nop 1", f"{sw} v4, v5", "s_nop 1", "v_max_u32 v4, v4, v5")
    for r in (8, 4, 2, 1): a("s_nop 1", f"v_max_u32_dpp v4, v4, v4 row_ror:{r} row_mask:0xf bank_mask:0xf")
    a("s_nop 1", "v_readfirstlane_b32 s30, v4", "s_nop 3", "s_and_b32 s31, s30, 0x7ff", "s_sub_u32 s31, 2047, s31", "s_mul_i32 s32, s31, 896",
      f"s_add_u32 s33, s32, {WS_H2}", "v_mul_u32_u24 v27, 14, v21")
    for i in range(7): a(f"buffer_load_ushort v{12+i}, v27, s[12:15], s33 offen offset:{2*i} sc0 sc1")
    a("s_lshl_b32 s25, s2, 4", "s_add_u32 s32, s32, s25", "s_add_u32 s33, s33, s25", f"s_add_u32 s34, s32, {WS_X1}", "v_lshlrev_b32 v24, 1, v26",
      "buffer_load_ushort v117, v24, s[12:15], s33 offen sc0 sc1", "buffer_load_ushort v118, v24, s[12:15], s34 offen sc0 sc1", "s_mov_b32 s35, 0xffff0000")
    for j in range(16): a(f"v_mov_b32 v{128+j}, 0")
    a("s_waitcnt vmcnt(2)"); ts(a, 4)
    def fm(b, acc, x):
        for i in range(4): a(f"v_lshlrev_b32 v120, 16, v{32+b+i}", f"v_and_b32 v121, s35, v{32+b+i}", f"v_fmac_f32 v{acc+2*i}, v120, {x}", f"v_fmac_f32 v{acc+2*i+1}, v121, {x}")
    for i in range(7):
        a(f"v_lshlrev_b32 v{12+i}, 16, v{12+i}"); fm(4*i, 128, f"v{12+i}"); fm(28+4*i, 136, f"v{12+i}")
    a("v_lshlrev_b32 v28, 8, v21", "v_lshl_add_u32 v28, v20, 5, v28", "ds_write_b128 v28, v[128:131]", "ds_write_b128 v28, v[132:135] offset:16",
      "ds_write_b128 v28, v[136:139] offset:128", "ds_write_b128 v28, v[140:143] offset:144", "s_waitcnt lgkmcnt(0)", "s_barrier",
      "v_and_b32 v29, 63, v0", "v_lshrrev_b32 v30, 6, v0", "v_lshlrev_b32 v31, 12, v30", "v_lshl_add_u32 v31, v29, 2, v31")
    for i in range(16): a(f"ds_read_b32 v{128+i}, v31 offset:{256*i}")
    a("s_waitcnt lgkmcnt(0)")
    for i in range(1, 16): a(f"v_add_f32 v128, v128, v{128+i}")
    a("v_lshlrev_b32 v31, 2, v0", "ds_write_b32 v31, v128 offset:16384", "s_waitcnt lgkmcnt(0)", "s_barrier",
      "v_cmp_gt_u32 vcc, 32, v0", "s_and_saveexec_b64 s[26:27], vcc", "s_cbranch_execz K3_PUB")
    for i in range(4): a(f"ds_read_b32 v{128+i}, v31 offset:{16384+256*i}", f"ds_read_b32 v{132+i}, v31 offset:{16384+128+256*i}")
    a("s_waitcnt lgkmcnt(0)")
    for i in range(1, 4): a(f"v_add_f32 v128, v128, v{128+i}", f"v_add_f32 v132, v132, v{132+i}")
    rbf(a, "v128"); rbf(a, "v132"); silu_bf(a, "v128", "v129"); a("v_mul_f32 v128, v128, v132"); rbf(a, "v128")
    a("v_or_b32 v128, 1, v128", "s_lshl_b32 s25, s2, 7", f"s_add_u32 s25, s25, {WS_YP}", "buffer_store_dword v128, v31, s[12:15], s25 offen sc0 sc1",
      "K3_PUB:", "s_mov_b64 exec, -1", "v_mul_u32_u24 v2, 28, v0", f"s_mov_b32 s24, {WS_YP}",
      "s_and_b32 s36, s30, 0xffff0000", "s_cmp_lt_i32 s36, 0", "s_cbranch_scc1 K4_POS", "s_not_b32 s36, s36", "s_and_b32 s36, s36, 0xffff0000", "s_branch K4_RD",
      "K4_POS:", "s_and_b32 s36, s36, 0x7fffffff", "K4_RD:", "v_mov_b32 v16, s36",
      f"v_mul_f32 v16, 0x{f2u(-1.4426950408889634):x}, v16", "v_exp_f32 v16, v16", "s_nop 0", "v_add_f32 v16, 1.0, v16", "v_rcp_f32 v16, v16", "s_nop 0")
    rbf(a, "v16")
    ts(a, 5)
    a("K3_SPIN:", "buffer_load_dwordx4 v[4:7], v2, s[12:15], s24 offen sc0 sc1", "buffer_load_dwordx3 v[8:10], v2, s[12:15], s24 offen offset:16 sc0 sc1", "s_waitcnt vmcnt(0)",
      "v_and_b32 v11, v4, v5", "v_and_b32 v12, v6, v7", "v_and_b32 v13, v8, v9", "v_and_b32 v11, v11, v12", "v_and_b32 v13, v13, v10", "v_and_b32 v11, v11, v13", "v_and_b32 v11, 1, v11",
      "v_cmp_ne_u32 vcc, 0, v11", "s_nop 3", "s_cmp_eq_u64 vcc, -1", "s_cbranch_scc1 K3_GO", "s_sleep 1", "s_branch K3_SPIN", "K3_GO:"); ts(a, 6)
    for j in range(8): a(f"v_mov_b32 v{128+j}, 0")
    for i in range(7):
        a(f"v_and_b32 v{4+i}, s35, v{4+i}"); fm(56+4*i, 128, f"v{4+i}")
    a("v_lshlrev_b32 v31, 5, v0", "ds_write_b128 v31, v[128:131]", "ds_write_b128 v31, v[132:135] offset:16", "s_waitcnt lgkmcnt(0)", "s_barrier",
      "v_cmp_gt_u32 vcc, 64, v0", "s_and_saveexec_b64 s[26:27], vcc", "s_cbranch_execz K2_END", "v_lshlrev_b32 v31, 2, v0")
    for i in range(32): a(f"ds_read_b32 v{32+i}, v31 offset:{256*i}")
    a("s_waitcnt lgkmcnt(0)")
    for i in range(1, 32): a(f"v_add_f32 v32, v32, v{32+i}")
    for sw in ("v_permlane32_swap_b32", "v_permlane16_swap_b32"):
        a("v_mov_b32 v33, v32", "s_nop 1", f"{sw} v32, v33", "s_nop 1", "v_add_f32 v32, v32, v33")
    a("s_nop 1", "v_add_f32_dpp v32, v32, v32 row_ror:8 row_mask:0xf bank_mask:0xf", "v_cmp_gt_u32 vcc, 8, v0", "s_and_b64 exec, exec, vcc")
    rbf(a, "v32"); a("v_mul_f32 v32, v32, v16"); rbf(a, "v32"); a("v_lshlrev_b32 v117, 16, v117", "v_lshlrev_b32 v118, 16, v118", "v_add_f32 v32, v32, v117"); rbf(a, "v32")
    a("v_mul_f32 v32, v32, v116"); rbf(a, "v32")
    a("v_add_f32 v32, v32, v118", "v_cvt_pk_bf16_f32 v32, v32, v32", "buffer_store_short v32, v24, s[16:19], s32 offen sc0 sc1")
    if os.environ.get("TS"):
        a("s_waitcnt vmcnt(0)"); ts(a, 7); a("s_cmp_lg_u32 s2, 3", "s_cbranch_scc1 K2_END", "v_mov_b32 v1, 0", "s_load_dwordx2 s[36:37], s[0:1], 104", "s_waitcnt lgkmcnt(0)")
        for i in range(1, 8): a(f"s_sub_u32 s56, s{60+2*i}, s60", "v_mov_b32 v2, s56", f"buffer_store_dword v2, v1, s[36:39], 0 offen offset:{4*i}")
    a("K2_END:", "s_endpgm")
```
